```python
import torch

def _softmax(x, axis=-1):
    return torch.softmax(x, dim=axis)
def _gelu(x):
    return torch.nn.functional.gelu(x, approximate="tanh")
def _silu(x):
    return torch.nn.functional.silu(x)
def _sigmoid(x):
    return torch.sigmoid(x)
def _layernorm(x, axis=-1, eps=1e-5):
    m = x.mean(dim=axis, keepdim=True)
    v = x.var(dim=axis, keepdim=True, unbiased=False)
    return (x - m) / torch.sqrt(v + eps)
def _scatter_add(tgt, idx, src, axis=0):
    return tgt.clone().index_add_(axis, idx, src)
def _segment_sum(src, seg, n):
    out = torch.zeros((n,) + src.shape[1:], dtype=src.dtype)
    return out.index_add_(0, seg, src)
def _pad(x, pw):
    flat = tuple(v for pair in reversed(pw) for v in pair)
    return torch.nn.functional.pad(x, flat)

kernel_name = 'gated_mix__mha_block_cached__dense_activation_squared_relu__decode'

def setup_inputs():

    _w = (lambda a: (lambda t: t.to(torch.bfloat16) if t.is_floating_point() else t)(torch.as_tensor(a)))
    def _A_setup():
        B, Sq, D = 2, 1, 448
        H, Sk, Dh = 16, 4096, 256
        return {
            "x": _w((lambda *s: torch.randn(*s, dtype=torch.bfloat16) * 0.05)(B, Sq, D)),
            "k_cache": _w((lambda *s: torch.randn(*s, dtype=torch.bfloat16) * 6.4)(B, H, Sk, Dh)),
            "v_cache": _w((lambda *s: torch.randn(*s, dtype=torch.bfloat16) * 3.2)(B, H, Sk, Dh)),
            "wq": _w((lambda *s: torch.randn(*s, dtype=torch.bfloat16) * 6.4)(D, H * Dh) * (D ** -0.5)),
            "wo": _w((lambda *s: torch.randn(*s, dtype=torch.bfloat16) * 3.2)(H * Dh, D) * ((H * Dh) ** -0.5)),
        }
    _A_in = _A_setup()

    def _B_setup():
        B, S, D, F = 2, 1, 448, 1792
        return {
            "x": _w((lambda *s: torch.randn(*s, dtype=torch.bfloat16) * 0.05)(B, S, D)),
            "w1": _w((lambda *s: torch.randn(*s, dtype=torch.bfloat16) * 0.2)(D, F)),
            "b1": _w((lambda *s: torch.randn(*s, dtype=torch.bfloat16) * 0.2)(F)),
            "w2": _w((lambda *s: torch.randn(*s, dtype=torch.bfloat16) * 0.2)(F, D)),
            "b2": _w((lambda *s: torch.randn(*s, dtype=torch.bfloat16) * 0.4)(D)),
        }
    _B_in = _B_setup()

    return {
        "A_x": _A_in["x"],
        "A_k_cache": _A_in["k_cache"],
        "A_v_cache": _A_in["v_cache"],
        "A_wq": _A_in["wq"],
        "A_wo": _A_in["wo"],
        "B_x": _B_in["x"],
        "B_w1": _B_in["w1"],
        "B_b1": _B_in["b1"],
        "B_w2": _B_in["w2"],
        "B_b2": _B_in["b2"],
        "gate_w": _w((lambda *s: torch.randn(*s, dtype=torch.bfloat16) * 0.1)(448) * 16.0),
    }

def reference(A_x, A_k_cache, A_v_cache, A_wq, A_wo, B_x, B_w1, B_b1, B_w2, B_b2, gate_w):
    def _A_ref(x, k_cache, v_cache, wq, wo):
        B, Sq, D = x.shape
        H, Dh = 16, 256
        q = (lambda x, *d: x.permute(*d))((x @ wq).reshape(B, Sq, H, Dh), 0, 2, 1, 3)
        scores = torch.einsum("bhqd,bhkd->bhqk", q, k_cache) * (Dh ** -0.5)
        p = _softmax(scores, axis=-1)
        o = torch.einsum("bhqk,bhkd->bhqd", p, v_cache)
        return (lambda x, *d: x.permute(*d))(o, 0, 2, 1, 3).reshape(B, Sq, H * Dh) @ wo

    def _B_ref(x, w1, b1, w2, b2):
        h = torch.einsum("bsd,df->bsf", x, w1) + b1
        zero = torch.zeros_like(h)
        r = torch.where(h > zero, h, zero)
        h = r * r
        out = torch.einsum("bsf,fd->bsd", h, w2) + b2
        return out

    x = A_x
    g = _sigmoid((x * gate_w).sum(-1, keepdims=True))
    a = _A_ref(x, A_k_cache, A_v_cache, A_wq, A_wo)
    b = _B_ref(x, B_w1, B_b1, B_w2, B_b2)
    return g * a + (1 - g) * b
```

```python
import re
TRANS = ("v_exp_f32", "v_log_f32", "v_rcp_f32", "v_rsq_f32", "v_sqrt_f32", "v_sin_f32", "v_cos_f32")
def regs_of(tok):
    tok = tok.strip()
    tok = tok.lstrip("-")
    m = re.fullmatch(r"abs\((.*)\)", tok)
    if m: tok = m.group(1)
    m = re.fullmatch(r"([vsa])(\d+)", tok)
    if m: return [(m.group(1), int(m.group(2)))]
    m = re.fullmatch(r"([vsa])\[(\d+):(\d+)\]", tok)
    if m: return [(m.group(1), i) for i in range(int(m.group(2)), int(m.group(3)) + 1)]
    if tok == "vcc": return [("s", 106), ("s", 107)]
    if tok == "exec": return [("s", 126), ("s", 127)]
    if tok == "m0": return [("s", 124)]
    return []
class Asm:
    def __init__(self):
        self.lines = []
        self.hist = []
        self.vm = []
        self.lg = []
        self.smem = False
    def raw(self, s): self.lines.append(s)
    def comment(self, s): self.lines.append("  ; " + s)
    def label(self, name):
        self.lines.append(name + ":")
        self.barrier_hist()
    def barrier_hist(self):
        self.lines.append("  s_nop 4")
        self.hist = []
    def _classify(self, op, ops):
        dst, src = [], []
        kind = "other"
        R = [regs_of(o.split()[0]) if o.strip() else [] for o in ops]
        if op.startswith("v_"):
            kind = "valu"
            if op.startswith("v_permlane") and "swap" in op:
                dst = R[0] + R[1]; src = R[0] + R[1]
            elif op.startswith("v_cmp"):
                dst = R[0]; src = sum(R[1:], [])
            elif op.startswith(("v_add_co", "v_sub_co", "v_addc_co")):
                dst = R[0] + R[1]; src = sum(R[2:], [])
            else:
                dst = R[0]; src = sum(R[1:], [])
                if op.startswith(("v_fmac", "v_dot2c", "v_writelane")) or "_dpp" in op: src = src + R[0]
        elif op.startswith("s_"):
            kind = "salu"
            if op.startswith(("s_load", "s_buffer_load")): kind = "smem"
            if op.startswith(("s_cmp", "s_cbranch", "s_branch", "s_waitcnt", "s_nop", "s_barrier", "s_endpgm", "s_sleep", "s_setprio")):
                src = sum(R, [])
            else:
                dst = R[0] if R else []; src = sum(R[1:], [])
        elif op.startswith(("buffer_", "global_")):
            kind = "vmem"
            if "load" in op and not any("lds" == o.strip().split()[-1] for o in ops[-1:]):
                dst = R[0]; src = sum(R[1:], [])
            else:
                src = sum(R, [])
        elif op.startswith("ds_"):
            kind = "ds"
            if op.startswith(("ds_read", "ds_bpermute", "ds_swizzle", "ds_permute")):
                dst = R[0]; src = sum(R[1:], [])
            else:
                src = sum(R, [])
        return kind, dst, src
    def _need(self, op, kind, dst, src, text):
        need = 0
        dist = 0
        isdpp = "_dpp" in op or " row_" in text or "quad_perm" in text
        for h in reversed(self.hist):
            if dist >= 8: break
            hd = set(h["dst"])
            def req(n):
                nonlocal need
                need = max(need, n - dist)
            if h["kind"] == "valu":
                vd = {r for r in hd if r[0] == "v"}
                sd = {r for r in hd if r[0] == "s"}
                if kind == "valu":
                    if isdpp and vd & set(src): req(2)
                    if op.startswith("v_permlane") and vd & set(src): req(2)
                    if op.startswith(("v_readlane", "v_readfirstlane")) and vd & set(src): req(1)
                    if h["op"].startswith(TRANS) and not op.startswith(TRANS) and vd & (set(src) | set(dst)): req(1)
                    if h["op"].startswith(TRANS) and vd & set(src): req(1)
                    if sd & set(src): req(4 if op.startswith(("v_readlane", "v_writelane")) else 2)
                    if h["op"].startswith("v_dot"):
                        if vd & (set(src) | set(dst)):
                            same = h["op"] == op
                            if same:
                                ab = set(h.get("_", []))
                                srcab = set(self._cur_ab)
                                if vd & srcab: req(3)
                            else: req(3)
                    if "_sdwa" in h["op"] or "op_sel" in h["text"] and not h["op"].startswith(("v_dot", "v_pk")):
                        if vd & set(src): req(1)
                if kind in ("vmem", "ds"):
                    if sd & set(src): req(5)
                    if h["op"].startswith("v_dot") and vd & (set(src) | set(dst)): req(3)
                    if h["op"].startswith(TRANS) and vd & set(src): req(1)
                if kind in ("salu", "smem") and sd & set(src): req(1)
            if h["kind"] == "vmem" and "store" in h["op"] and ("x4" in h["op"] or "x3" in h["op"]):
                if set(h["data"]) & set(dst): req(2)
            if h["kind"] == "salu" and ("s", 124) in hd and kind == "vmem" and text.rstrip().endswith("lds"): req(1)
            dist += h["slots"]
        return need
    def I(self, text, tag=None):
        text = text.strip()
        m = re.match(r"(\S+)\s*(.*)", text)
        op, rest = m.group(1), m.group(2)
        ops = [o for o in re.split(r",\s*(?![^\[]*\])", rest)] if rest else []
        kind, dst, src = self._classify(op, ops)
        self._cur_ab = []
        if op.startswith("v_dot"):
            R = [regs_of(o.split()[0]) for o in ops]
            self._cur_ab = R[1] + R[2]
        n = self._need(op, kind, dst, src, text)
        if n > 0:
            self.lines.append(f"  s_nop {n-1}")
            self.hist.append(dict(op="s_nop", kind="salu", dst=[], src=[], slots=n, text=""))
        self.lines.append("  " + text)
        slots = 1
        if op == "s_nop": slots = int(ops[0]) + 1
        h = dict(op=op, kind=kind, dst=dst, src=src, slots=slots, text=text)
        if kind == "vmem" and "store" in op:
            h["data"] = regs_of(ops[0]) if op.startswith("buffer") else regs_of(ops[1])
        self.hist.append(h)
        self.hist = self.hist[-12:]
        if kind == "vmem": self.vm.append(tag)
        if kind == "ds": self.lg.append(tag)
        if kind == "smem": self.smem = True
        assert len(self.vm) <= 63, "vmcnt overflow"
    def wait_vm(self, tag=None):
        if tag is None:
            if self.vm: self.I("s_waitcnt vmcnt(0)")
            self.vm = []
            return
        if tag not in self.vm: return
        idx = len(self.vm) - 1 - self.vm[::-1].index(tag)
        n = len(self.vm) - 1 - idx
        self.I(f"s_waitcnt vmcnt({n})")
        self.vm = self.vm[idx + 1:]
    def wait_lg(self, tag=None):
        if tag is None or self.smem:
            self.I("s_waitcnt lgkmcnt(0)")
            self.lg = []; self.smem = False
            return
        if tag not in self.lg: return
        idx = len(self.lg) - 1 - self.lg[::-1].index(tag)
        n = len(self.lg) - 1 - idx
        assert n <= 15
        self.I(f"s_waitcnt lgkmcnt({n})")
        self.lg = self.lg[idx + 1:]
    def text(self): return "\n".join(self.lines) + "\n"
```

```python
import sys, argparse
from asmlib import Asm
KN = "gated_mix__mha_block_cached__dense_activation_squared_relu__decode_kernel"
HDR = open("gated_mix__mha_block_cached__dense_activation_squared_relu__decode.s.ref").read().split("; Override launch")[0]

QP = 0
OA = 0
QS = 8192
HP = 8704
MX = 9216
LW = 9248
PS = 9472
MP = 12288
OP = 12288
LDS_BYTES = 12288 + 16384
PITCH = 1792
WS_P = 0
WS_M = 0x80000
WS_ML = 0x100000
WS_BYTES = 0x101000
C_SCALE = 0.0625 * 1.4426950408889634
import struct
def f2u(f): return struct.unpack("<I", struct.pack("<f", f))[0]

def srd(a, d, p, nbytes):
    a.I(f"s_mov_b32 s{d}, s{p}")
    a.I(f"s_mov_b32 s{d+1}, s{p+1}")
    a.I(f"s_mov_b32 s{d+2}, {nbytes}")
    a.I(f"s_mov_b32 s{d+3}, 0x20000")

def dpp(op, d, s0, s1, ctrl, rm="0xf", bm="0xf"):
    return f"{op}_dpp v{d}, v{s0}, v{s1} {ctrl} row_mask:{rm} bank_mask:{bm}"

def wave_reduce63(a, op, v):
    for c in ("quad_perm:[1,0,3,2]", "quad_perm:[2,3,0,1]", "row_half_mirror", "row_mirror"):
        a.I(dpp(op, v, v, v, c))
    a.I(dpp(op, v, v, v, "row_bcast:15", rm="0xa"))
    a.I(dpp(op, v, v, v, "row_bcast:31", rm="0xc"))

LO = ""
HI_SEL = " op_sel:[1,0,0] op_sel_hi:[0,1,1]"
LL = " op_sel:[0,0,0] op_sel_hi:[0,1,1]"
HH = " op_sel:[1,0,0] op_sel_hi:[1,1,1]"

def gen_main(a, o):
    kvf = o.kvflags
    wf = o.wflags
    a.raw(f".globl {KN}"); a.raw(".p2align 8"); a.raw(f".type {KN},@function"); a.raw(f"{KN}:")
    a.I("s_cmp_ge_u32 s2, 256")
    a.I("s_cbranch_scc1 L_end")
    a.I("s_load_dwordx8 s[4:11], s[0:1], 0")
    a.I("s_load_dwordx8 s[12:19], s[0:1], 32")
    a.I("s_load_dwordx8 s[20:27], s[0:1], 64")
    a.I("s_load_dwordx4 s[28:31], s[0:1], 96")
    a.I("v_lshrrev_b32 v6, 6, v0")
    a.I("v_and_b32 v1, 63, v0")
    a.I("v_readfirstlane_b32 s3, v6")
    sH, sB, sS, sJ, sT, sU, sSO, sSELL, sSELH, sROW = 92, 93, 94, 95, 96, 97, 98, 99, 100, 101
    a.I(f"s_and_b32 s{sH}, s2, 7")
    a.I(f"s_lshl_b32 s{sH}, s{sH}, 1")
    a.I(f"s_bfe_u32 s{sT}, s2, 0x10003")
    a.I(f"s_add_u32 s{sH}, s{sH}, s{sT}")
    a.I(f"s_bfe_u32 s{sB}, s2, 0x10004")
    a.I(f"s_lshr_b32 s{sS}, s2, 5")
    a.I(f"s_lshl_b32 s{sJ}, s{sH}, 3")
    a.I(f"s_add_u32 s{sJ}, s{sJ}, s{sS}")
    a.I(f"s_lshl_b32 s{sROW}, s{sB}, 7")
    a.I(f"s_add_u32 s{sROW}, s{sROW}, s{sJ}")
    a.I(f"s_lshl_b32 s{sT}, s{sROW}, 18")
    a.I(f"s_lshl_b32 s{sU}, s3, 15")
    a.I(f"s_add_u32 s{sT}, s{sT}, s{sU}")
    a.I(f"v_lshlrev_b32 v7, 4, v1")
    a.I(f"v_add_u32 v2, s{sT}, v7")
    a.I("s_waitcnt lgkmcnt(0)"); a.smem = False
    srd(a, 32, 6, 64 << 20)
    srd(a, 36, 8, 64 << 20)
    pool = list(range(32, 256, 4))
    buf = {}
    def alloc(tag):
        r = pool.pop(0); buf[tag] = r; return r
    def free(tag):
        pool.append(buf.pop(tag))
    last_so = [None]
    def set_so(v):
        if v == 0: return "0"
        if last_so[0] != v:
            a.I(f"s_mov_b32 s{sSO}, {v}")
            last_so[0] = v
        return f"s{sSO}"
    def issue(tag):
        kind, i = tag
        r = alloc(tag)
        if kind in ("K", "V"):
            so = set_so((i * 1024) & ~4095)
            a.I(f"buffer_load_dwordx4 v[{r}:{r+3}], v2, s[{32 if kind=='K' else 36}:{35 if kind=='K' else 39}], {so} offen offset:{(i*1024)&4095} {kvf}", tag)
        elif kind == "WQ":
            so = set_so(i * 16384)
            a.I(f"buffer_load_dwordx4 v[{r}:{r+3}], v3, s[40:43], {so} offen {wf}", tag)
        elif kind == "WO":
            off = i * 896
            so = set_so((off // 3584) * 3584)
            a.I(f"buffer_load_dwordx4 v[{r}:{r+3}], v4, s[44:47], {so} offen offset:{off % 3584} {wf}", tag)
        elif kind == "W1":
            so = set_so(i * 32 * 3584)
            a.I(f"buffer_load_dwordx4 v[{r}:{r+3}], v20, s[48:51], {so} offen {wf}", tag)
        elif kind == "W2":
            a.I(f"buffer_load_dwordx4 v[{r}:{r+3}], v21, s[52:55], 0 offen offset:{i*896} {wf}", tag)
    NK0 = o.nk0
    for i in range(NK0): issue(("K", i))
    a.I(f"s_mul_i32 s{sT}, s{sB}, 896")
    a.I(f"s_mul_i32 s{sU}, s3, 112")
    a.I(f"s_add_u32 s{sT}, s{sT}, s{sU}")
    a.I(f"s_add_u32 s14, s4, s{sT}")
    a.I(f"s_addc_u32 s15, s5, 0")
    a.I("s_load_dwordx16 s[64:79], s[14:15], 0")
    a.I("s_load_dwordx8 s[80:87], s[14:15], 64")
    a.I("s_load_dwordx4 s[88:91], s[14:15], 96")
    srd(a, 40, 10, 448 * 8192)
    srd(a, 44, 12, 4096 * 896)
    srd(a, 48, 16, 448 * 3584)
    srd(a, 52, 20, 1792 * 896)
    srd(a, 56, 30, WS_BYTES)
    srd(a, 60, 4, 1792)
    a.I(f"s_min_u32 s{sT}, s{sJ}, 111")
    a.I(f"s_lshl_b32 s{sT}, s{sT}, 5")
    a.I(f"s_lshl_b32 s{sU}, s3, 2")
    a.I(f"s_add_u32 s{sT}, s{sT}, s{sU}")
    a.I(f"s_add_u32 s18, s18, s{sT}")
    a.I(f"s_addc_u32 s19, s19, 0")
    a.I("s_load_dword s6, s[18:19], 0")
    a.I("v_lshrrev_b32 v23, 1, v1")
    a.I(f"s_lshl_b32 s{sT}, s3, 6")
    a.I(f"v_add_u32 v23, s{sT}, v23")
    a.I("v_mul_u32_u24 v20, 0xe00, v23")
    a.I("v_and_b32 v24, 1, v1")
    a.I("v_lshlrev_b32 v24, 4, v24")
    a.I(f"s_lshl_b32 s{sT}, s{sJ}, 5")
    a.I(f"v_add3_u32 v20, v20, v24, s{sT}")
    a.I(f"s_mul_i32 s{sT}, s{sB}, 896")
    a.I(f"v_lshl_add_u32 v22, v23, 1, s{sT}")
    a.I("v_cmp_gt_u32 vcc, 56, v1")
    a.I("v_mov_b32 v25, 0x80000000")
    a.I("v_cndmask_b32 v25, v25, v7, vcc")
    a.I(f"s_lshl_b32 s{sT}, s{sJ}, 3")
    a.I(f"s_add_u32 s{sT}, s{sT}, s3")
    a.I(f"s_mul_i32 s{sT}, s{sT}, 1792")
    a.I(f"v_add_u32 v21, s{sT}, v25")
    a.I(f"s_lshl_b32 s{sT}, s{sH}, 3")
    a.I(f"s_add_u32 s{sT}, s{sT}, s3")
    a.I(f"s_mul_i32 s{sT}, s{sT}, {32*896}")
    a.I(f"v_add_u32 v4, s{sT}, v25")
    a.I("buffer_load_ushort v26, v22, s[60:63], 0 offen", ("X", 0))
    a.I("buffer_load_ushort v27, v22, s[60:63], 0 offen offset:64", ("X", 1))
    issue(("W1", 0)); issue(("W1", 1)); issue(("W2", 0)); issue(("W2", 1))
    a.I("v_lshrrev_b32 v6, 5, v1")
    a.I("v_and_b32 v24, 31, v1")
    a.I("v_lshlrev_b32 v24, 4, v24")
    a.I(f"s_mul_i32 s{sT}, s3, {56*8192}")
    a.I(f"s_lshl_b32 s{sU}, s{sH}, 9")
    a.I(f"s_add_u32 s{sT}, s{sT}, s{sU}")
    a.I(f"v_lshl_add_u32 v3, v6, 13, v24")
    a.I(f"v_add_u32 v3, s{sT}, v3")
    for j in range(28): issue(("WQ", j))
    pending = [("K", i) for i in range(NK0, 32)] + [("WO", i) for i in range(32)] + [("V", i) for i in range(32)]
    def pump():
        while pending and pool and len(a.vm) < 60:
            issue(pending.pop(0))
    pump()
    a.I("v_lshlrev_b32 v5, 4, v6")
    a.I(f"s_mov_b32 s{sSELL}, 0x05040100")
    a.I(f"s_mov_b32 s{sSELH}, 0x07060302")
    a.wait_vm(("W1", 0))
    a.I("v_lshlrev_b32 v30, 16, v26")
    a.I("v_lshlrev_b32 v31, 16, v27")
    r = buf[("W1", 0)]
    for e in range(4):
        a.I(f"v_dot2_f32_bf16 v{8+2*e}, v{r+e}, v26, 0")
        a.I(f"v_dot2_f32_bf16 v{9+2*e}, v{r+e}, v30, 0")
    a.wait_vm(("W1", 1))
    r = buf[("W1", 1)]
    for e in range(4):
        a.I(f"v_dot2_f32_bf16 v{8+2*e}, v{r+e}, v27, v{8+2*e}")
        a.I(f"v_dot2_f32_bf16 v{9+2*e}, v{r+e}, v31, v{9+2*e}")
    free(("W1", 0)); free(("W1", 1)); pump()
    for e in range(4):
        a.I(f"v_permlane16_swap_b32 v{8+2*e}, v{9+2*e}")
    for e in range(4):
        a.I(f"v_add_f32 v{8+2*e}, v{8+2*e}, v{9+2*e}")
    a.I("v_permlane32_swap_b32 v8, v10")
    a.I("v_permlane32_swap_b32 v12, v14")
    a.I("v_add_f32 v8, v8, v10")
    a.I("v_add_f32 v12, v12, v14")
    a.I(dpp("v_add_f32", 9, 8, 8, "row_ror:8", bm="0x3"))
    a.I(dpp("v_add_f32", 9, 12, 12, "row_ror:8", bm="0xc"))
    a.I(dpp("v_add_f32", 10, 9, 9, "row_shl:4", bm="0x5"))
    a.I(dpp("v_add_f32", 10, 9, 9, "row_shr:4", bm="0xa"))
    a.I(dpp("v_add_f32", 10, 10, 10, "quad_perm:[2,3,0,1]"))
    a.I("v_and_b32 v11, 1, v1")
    a.I("v_lshlrev_b32 v11, 3, v11")
    a.I("v_lshrrev_b32 v12, 4, v1")
    a.I("v_bfe_u32 v13, v1, 3, 1")
    a.I("v_lshl_add_u32 v12, v13, 2, v12")
    a.I("v_add_u32 v11, v11, v12")
    a.I(f"s_lshl_b32 s{sT}, s3, 2")
    a.I(f"v_lshl_add_u32 v11, v11, 5, s{sT}")
    a.I(f"ds_write_b32 v11, v10 offset:{HP}")
    a.wait_lg()
    for j in range(28):
        a.wait_vm(("WQ", j))
        r = buf[("WQ", j)]
        vb = 26 + (j & 1)
        a.I(f"v_bfe_u32 v{vb}, s{64+j}, v5, 16")
        a.I(f"v_lshlrev_b32 v{vb+4}, 16, v{vb}")
        for e in range(4):
            c0 = "0" if j == 0 else f"v{8+2*e}"
            c1 = "0" if j == 0 else f"v{9+2*e}"
            a.I(f"v_dot2_f32_bf16 v{8+2*e}, v{r+e}, v{vb}, {c0}")
            a.I(f"v_dot2_f32_bf16 v{9+2*e}, v{r+e}, v{vb+4}, {c1}")
        free(("WQ", j))
        if j < 22: pump()
    def fold_and_write(base):
        for k in range(4): a.I(f"v_permlane32_swap_b32 v{8+k}, v{12+k}")
        for k in range(4): a.I(f"v_add_f32 v{8+k}, v{8+k}, v{12+k}")
        a.I(f"ds_write_b128 v28, v[8:11] offset:{base}")
    a.I("v_lshlrev_b32 v28, 1, v24")
    a.I("v_lshl_add_u32 v28, v6, 4, v28")
    a.I(f"s_lshl_b32 s{sT}, s3, 10")
    a.I(f"v_add_u32 v28, s{sT}, v28")
    fold_and_write(QP)
    a.wait_lg()
    a.I("s_barrier")
    a.I("v_and_b32 v20, 255, v0")
    a.I("v_lshlrev_b32 v21, 2, v20")
    for w in range(8): a.I(f"ds_read_b32 v{8+w}, v21 offset:{QP + w*1024}", ("q2", w))
    a.I(f"s_lshl_b32 s{sT}, s3, 6")
    a.I(f"v_mov_b32 v22, s{sT}")
    hb = [alloc(("H", i)) for i in range(4)] if len(pool) >= 4 else None
    assert hb is not None
    for i in range(4): a.I(f"ds_read_b128 v[{hb[i]}:{hb[i]+3}], v22 offset:{HP + i*16}", ("h2", i))
    a.wait_lg(("q2", 7))
    a.I("v_add_f32 v8, v8, v9"); a.I("v_add_f32 v10, v10, v11"); a.I("v_add_f32 v12, v12, v13"); a.I("v_add_f32 v14, v14, v15")
    a.I("v_add_f32 v8, v8, v10"); a.I("v_add_f32 v12, v12, v14"); a.I("v_add_f32 v8, v8, v12")
    a.I("v_cvt_pk_bf16_f32 v8, v8, v8")
    a.I("v_lshlrev_b32 v21, 1, v20")
    a.I(f"ds_write_b16 v21, v8 offset:{QS}")
    a.wait_lg(("h2", 3))
    for hh in range(2):
        x0, x1 = hb[2*hh], hb[2*hh+1]
        a.I(f"v_add_f32 v{x0}, v{x0}, v{x0+1}"); a.I(f"v_add_f32 v{x0+2}, v{x0+2}, v{x0+3}")
        a.I(f"v_add_f32 v{x1}, v{x1}, v{x1+1}"); a.I(f"v_add_f32 v{x1+2}, v{x1+2}, v{x1+3}")
        a.I(f"v_add_f32 v{x0}, v{x0}, v{x0+2}"); a.I(f"v_add_f32 v{x1}, v{x1}, v{x1+2}")
        a.I(f"v_add_f32 v{x0}, v{x0}, v{x1}")
    h0, h1 = hb[0], hb[2]
    a.I(f"v_cvt_pk_bf16_f32 v20, v{h0}, v{h1}")
    a.I(f"s_lshl_b32 s{sT}, s6, 16")
    a.I(f"s_and_b32 s{sU}, s6, 0xffff0000")
    a.I("v_lshlrev_b32 v21, 16, v20")
    a.I("v_and_b32 v22, 0xffff0000, v20")
    a.I(f"v_add_f32 v21, s{sT}, v21")
    a.I(f"v_add_f32 v22, s{sU}, v22")
    a.I("v_cvt_pk_bf16_f32 v20, v21, v22")
    a.I("v_lshlrev_b32 v21, 16, v20")
    a.I("v_and_b32 v22, 0xffff0000, v20")
    a.I("v_max_f32 v21, 0, v21")
    a.I("v_max_f32 v22, 0, v22")
    a.I("v_mul_f32 v21, v21, v21")
    a.I("v_mul_f32 v22, v22, v22")
    a.I("v_cvt_pk_bf16_f32 v20, v21, v22")
    a.I("v_and_b32 v21, 0xffff, v20")
    a.I("v_lshrrev_b32 v22, 16, v20")
    a.I("v_lshlrev_b32 v26, 16, v20")
    a.I("v_and_b32 v27, 0xffff0000, v20")
    for i in range(4): free(("H", i))
    r0, r1 = buf[("W2", 0)], buf[("W2", 1)]
    for e in range(4):
        a.I(f"v_dot2_f32_bf16 v{8+2*e}, v{r0+e}, v21, 0")
        a.I(f"v_dot2_f32_bf16 v{9+2*e}, v{r0+e}, v26, 0")
    for e in range(4):
        a.I(f"v_dot2_f32_bf16 v{8+2*e}, v{r1+e}, v22, v{8+2*e}")
        a.I(f"v_dot2_f32_bf16 v{9+2*e}, v{r1+e}, v27, v{9+2*e}")
    free(("W2", 0)); free(("W2", 1))
    a.I(f"s_lshl_b32 s{sT}, s3, 11")
    a.I(f"v_lshl_add_u32 v29, v1, 5, s{sT}")
    a.I(f"ds_write_b128 v29, v[8:11] offset:{MP}")
    a.I(f"ds_write_b128 v29, v[12:15] offset:{MP+16}")
    a.wait_lg()
    a.I("s_barrier")
    a.I(f"ds_read_b128 v[16:19], v24 offset:{QS}", "q")
    def sum8_store(base, wsoff, label, tmp, sentinel_guard):
        a.I("s_cmp_ge_u32 s3, 2")
        a.I(f"s_cbranch_scc1 {label}")
        a.I("v_lshlrev_b32 v20, 4, v0")
        for w in range(8): a.I(f"ds_read_b128 v[{tmp[w]}:{tmp[w]+3}], v20 offset:{base + w*2048}", ("s8", w))
        a.I("v_cmp_gt_u32 vcc, 112, v0")
        a.I("v_mov_b32 v21, 0x80000000")
        a.I(f"s_mul_i32 s{sT}, s{sROW}, {PITCH}")
        a.I(f"s_add_u32 s{sT}, s{sT}, {wsoff}")
        a.I("v_cndmask_b32 v20, v21, v20, vcc")
        for lvl in (1, 2, 4):
            for w in range(0, 8, 2*lvl):
                if lvl == 1: a.wait_lg(("s8", w + 1))
                for k in range(4):
                    a.I(f"v_add_f32 v{tmp[w]+k}, v{tmp[w]+k}, v{tmp[w+lvl]+k}")
        n0 = len(a.vm)
        a.I(f"buffer_store_dwordx4 v[{tmp[0]}:{tmp[0]+3}], v20, s[56:59], s{sT} offen {o.stflags}")
        a.vm = a.vm[:n0]
        a.label(label)
    need = 8 - len(pool)
    assert need <= 2, need
    tmp = list(pool[:8])
    extra = [8, 12][:max(0, need)]
    tmp = tmp + extra
    sum8_store(MP, WS_M, "L_mdone", tmp, False)
    a.wait_lg()
    a.I("s_nop 1")
    pump()
    lvl = {}
    T = [20, 21, 22, 23, 26, 27, 8, 9, 10, 11, 12, 13]
    tfree = list(T)
    a.I("s_mov_b32 s64, 0xcccccccc"); a.I("s_mov_b32 s65, 0xcccccccc")
    a.I("s_mov_b32 s66, 0xaaaaaaaa"); a.I("s_mov_b32 s67, 0xaaaaaaaa")
    def merge(level, A, B):
        if level == 0:
            a.I(f"v_permlane16_swap_b32 v{A}, v{B}")
            a.I(f"v_add_f32 v{A}, v{A}, v{B}")
            tfree.append(B); return A
        if level in (1, 2):
            R = tfree.pop(0)
            if level == 1:
                a.I(dpp("v_add_f32", R, A, A, "row_ror:8", bm="0x3"))
                a.I(dpp("v_add_f32", R, B, B, "row_ror:8", bm="0xc"))
            else:
                a.I(dpp("v_add_f32", R, A, A, "row_shl:4", bm="0x5"))
                a.I(dpp("v_add_f32", R, B, B, "row_shr:4", bm="0xa"))
            tfree.extend([A, B]); return R
        q = "quad_perm:[2,3,0,1]" if level == 3 else "quad_perm:[1,0,3,2]"
        m = "s[64:65]" if level == 3 else "s[66:67]"
        a.I(dpp("v_add_f32", A, A, A, q))
        a.I(dpp("v_add_f32", B, B, B, q))
        a.I(f"v_cndmask_b32 v{A}, v{A}, v{B}, {m}")
        tfree.append(B); return A
    for i in range(32):
        a.wait_vm(("K", i))
        r = buf[("K", i)]
        t = tfree.pop(0)
        a.I(f"v_dot2_f32_bf16 v{t}, v{r}, v16, 0")
        for e in range(1, 4): a.I(f"v_dot2_f32_bf16 v{t}, v{r+e}, v{16+e}, v{t}")
        free(("K", i)); pump()
        L = 0
        while L in lvl:
            t = merge(L, lvl.pop(L), t); L += 1
        lvl[L] = t
    vS = lvl[5]
    a.I(f"v_cvt_pk_bf16_f32 v{vS}, v{vS}, v{vS}")
    a.I(f"v_and_b32 v30, 0xffff0000, v{vS}")
    a.I("v_mov_b32 v20, v30")
    wave_reduce63(a, "v_max_f32", 20)
    a.I("v_readlane_b32 s68, v20, 63")
    a.I(f"s_lshl_b32 s{sT}, s3, 2")
    a.I(f"v_mov_b32 v31, s{sT}")
    a.I("v_mov_b32 v20, s68")
    a.I(f"ds_write_b32 v31, v20 offset:{MX}")
    a.wait_lg()
    a.I("s_barrier")
    a.I("v_mov_b32 v21, 0")
    a.I(f"ds_read_b128 v[8:11], v21 offset:{MX}")
    a.I(f"ds_read_b128 v[12:15], v21 offset:{MX+16}")
    a.I("v_bfrev_b32 v22, v1")
    a.I("v_bfe_u32 v22, v22, 27, 5")
    a.I("v_lshlrev_b32 v22, 2, v22")
    a.I(f"s_lshl_b32 s{sT}, s3, 8")
    a.I(f"v_lshl_add_u32 v23, v6, 7, s{sT}")
    a.I("v_add_u32 v22, v22, v23")
    a.wait_lg()
    a.I("v_max3_f32 v8, v8, v9, v10"); a.I("v_max3_f32 v12, v12, v13, v14"); a.I("v_max3_f32 v8, v8, v11, v15")
    a.I("v_max_f32 v7, v8, v12")
    a.I("v_sub_f32 v20, v30, v7")
    a.I(f"v_mul_f32 v20, {hex(f2u(C_SCALE))}, v20")
    a.I("v_exp_f32 v20, v20")
    a.I(f"ds_write_b32 v22, v20 offset:{PS}")
    a.I("v_mov_b32 v21, v20")
    wave_reduce63(a, "v_add_f32", 21)
    a.I("v_readlane_b32 s68, v21, 63")
    a.I("v_mov_b32 v21, s68")
    a.I(f"ds_write_b32 v31, v21 offset:{LW}")
    a.wait_lg()
    PB = [16, 24]
    a.I(f"ds_read_b128 v[16:19], v23 offset:{PS}", ("p", 0))
    wo_regs = {i: [buf[("WO", i)] + e for e in range(4)] for i in range(32)} if all(("WO", i) in buf for i in range(32)) else None
    assert wo_regs is not None
    wp = {}
    spare = [30]
    def perm_pair(j):
        A, B = wo_regs[2*j], wo_regs[2*j+1]
        out = []
        for e in range(4):
            t = spare.pop(0)
            a.I(f"v_perm_b32 v{t}, v{B[e]}, v{A[e]}, s{sSELL}")
            a.I(f"v_perm_b32 v{B[e]}, v{B[e]}, v{A[e]}, s{sSELH}")
            spare.append(A[e])
            out += [t, B[e]]
        wp[j] = out
    for i in range(32):
        if i % 4 == 0:
            c = i // 4
            if c + 1 < 8:
                nb = PB[(c + 1) & 1]
                a.I(f"ds_read_b128 v[{nb}:{nb+3}], v23 offset:{PS + (c+1)*16}", ("p", c + 1))
            a.wait_lg(("p", c))
        a.wait_vm(("V", i))
        r = buf[("V", i)]
        p = PB[(i // 4) & 1] + (i % 4)
        for e in range(4):
            a.I(f"v_lshlrev_b32 v20, 16, v{r+e}")
            a.I(f"v_and_b32 v21, 0xffff0000, v{r+e}")
            if i == 0:
                a.I(f"v_mul_f32 v{8+2*e}, v20, v{p}")
                a.I(f"v_mul_f32 v{9+2*e}, v21, v{p}")
            else:
                a.I(f"v_fmac_f32 v{8+2*e}, v20, v{p}")
                a.I(f"v_fmac_f32 v{9+2*e}, v21, v{p}")
        free(("V", i)); pump()
        if i < 16: perm_pair(i)
    assert not pending
    fold_and_write(OA)
    a.I("v_and_b32 v20, 15, v1")
    a.I("v_lshrrev_b32 v21, 4, v1")
    a.I("v_lshlrev_b32 v20, 3, v20")
    a.I("v_lshl_add_u32 v20, v21, 11, v20")
    a.I(f"s_lshl_b32 s{sT}, s3, 7")
    a.I(f"v_add_u32 v20, s{sT}, v20")
    a.wait_lg()
    a.I("s_barrier")
    a.I(f"ds_read_b64 v[16:17], v20 offset:{OA}")
    a.I(f"ds_read_b64 v[18:19], v20 offset:{OA+1024}")
    a.wait_lg()
    a.I("v_add_f32 v16, v16, v18"); a.I("v_add_f32 v17, v17, v19")
    a.I("v_permlane16_swap_b32 v16, v17")
    a.I("v_add_f32 v16, v16, v17")
    a.I("v_mov_b32 v17, v16")
    a.I("v_permlane32_swap_b32 v16, v17")
    a.I("v_add_f32 v16, v16, v17")
    a.I("v_mov_b32 v17, v16")
    a.I("v_permlane16_swap_b32 v16, v17")
    a.I("v_cvt_pk_bf16_f32 v16, v16, v17")
    for j in range(16): a.I(f"v_readlane_b32 s{64+j}, v16, {j}")
    for j in range(16):
        for c in range(8):
            cc = "0" if j == 0 else f"v{8+c}"
            a.I(f"v_dot2_f32_bf16 v{8+c}, v{wp[j][c]}, s{64+j}, {cc}")
    a.I(f"ds_write_b128 v29, v[8:11] offset:{OP}")
    a.I(f"ds_write_b128 v29, v[12:15] offset:{OP+16}")
    a.wait_lg()
    a.I("s_barrier")
    tmp = list(pool[:8])
    a.I("s_cmp_lg_u32 s3, 2")
    a.I("s_cbranch_scc1 L_noml")
    a.I("v_mov_b32 v21, 0")
    a.I(f"ds_read_b128 v[8:11], v21 offset:{LW}")
    a.I(f"ds_read_b128 v[12:15], v21 offset:{LW+16}")
    a.I("v_cmp_eq_u32 vcc, 0, v1")
    a.I("v_mov_b32 v22, 0x80000000")
    a.I(f"s_lshl_b32 s{sT}, s{sROW}, 3")
    a.I(f"s_add_u32 s{sT}, s{sT}, {WS_ML}")
    a.I("v_cndmask_b32 v22, v22, v21, vcc")
    a.wait_lg()
    a.I("v_add_f32 v8, v8, v9"); a.I("v_add_f32 v10, v10, v11"); a.I("v_add_f32 v12, v12, v13"); a.I("v_add_f32 v14, v14, v15")
    a.I("v_add_f32 v8, v8, v10"); a.I("v_add_f32 v12, v12, v14"); a.I("v_add_f32 v9, v8, v12")
    a.I("v_mov_b32 v8, v7")
    a.I(f"buffer_store_dwordx2 v[8:9], v22, s[56:59], s{sT} offen {o.stflags}")
    a.label("L_noml")
    sum8_store(OP, WS_P, "L_pdone", tmp, True)
    a.label("L_end")
    a.I("s_endpgm")

def gen_reduce(a, o):
    a.raw(".globl k2_reduce_kernel"); a.raw(".p2align 8"); a.raw(".type k2_reduce_kernel,@function"); a.raw("k2_reduce_kernel:")
    a.hist = []; a.vm = []; a.lg = []
    a.I("s_cmp_ge_u32 s2, 224")
    a.I("s_cbranch_scc1 L2_end")
    a.I("s_load_dwordx2 s[4:5], s[0:1], 0")
    a.I("s_load_dwordx8 s[20:27], s[0:1], 64")
    a.I("s_load_dwordx4 s[28:31], s[0:1], 96")
    a.I("s_cmp_ge_u32 s2, 112")
    a.I("s_cselect_b32 s40, 1, 0")
    a.I("s_mul_i32 s41, s40, 112")
    a.I("s_sub_u32 s41, s2, s41")
    a.I("v_mov_b32 v1, v0")
    a.I("s_waitcnt lgkmcnt(0)"); a.smem = False
    srd(a, 56, 30, WS_BYTES)
    srd(a, 60, 4, 1792)
    srd(a, 44, 24, 896)
    srd(a, 48, 22, 896)
    srd(a, 52, 26, 1792)
    reduce_body(a, o, sB=40, sU=41, sT=42, sT2=43)
    a.label("L2_end")
    a.I("s_endpgm")

def reduce_body(a, o, sB, sU, sT, sT2):
    lf = o.ldflags
    a.I(f"s_mul_i32 s{sT}, s{sB}, {128*PITCH}")
    a.I(f"s_lshl_b32 s{sT2}, s{sU}, 4")
    a.I(f"s_add_u32 s{sT}, s{sT}, s{sT2}")
    a.I(f"v_mul_u32_u24 v2, {PITCH}, v1")
    a.I(f"v_add_u32 v2, s{sT}, v2")
    a.I(f"v_add_u32 v3, {64*PITCH}, v2")
    a.I(f"s_mov_b32 s{sT2}, {WS_M}")
    a.I(f"buffer_load_dwordx4 v[8:11], v2, s[56:59], 0 offen {lf}", "P0")
    a.I(f"buffer_load_dwordx4 v[12:15], v3, s[56:59], 0 offen {lf}", "P1")
    a.I(f"buffer_load_dwordx4 v[16:19], v2, s[56:59], s{sT2} offen {lf}", "M0")
    a.I(f"buffer_load_dwordx4 v[20:23], v3, s[56:59], s{sT2} offen {lf}", "M1")
    a.I(f"s_lshl_b32 s{sT}, s{sB}, 10")
    a.I(f"s_add_u32 s{sT}, s{sT}, {WS_ML}")
    a.I("v_lshlrev_b32 v4, 3, v1")
    a.I(f"buffer_load_dwordx2 v[24:25], v4, s[56:59], s{sT} offen {lf}", "ML0")
    a.I(f"buffer_load_dwordx2 v[26:27], v4, s[56:59], s{sT} offen offset:512 {lf}", "ML1")
    a.I("v_lshlrev_b32 v5, 4, v1")
    a.I("v_cmp_gt_u32 vcc, 56, v1")
    a.I("v_mov_b32 v6, 0x80000000")
    a.I("v_cndmask_b32 v5, v6, v5, vcc")
    a.I(f"s_mul_i32 s{sT}, s{sB}, 896")
    a.I(f"buffer_load_dwordx4 v[28:31], v5, s[60:63], s{sT} offen", "X")
    a.I(f"buffer_load_dwordx4 v[32:35], v5, s[44:47], 0 offen", "G")
    a.I("v_lshrrev_b32 v6, 4, v1")
    a.I(f"s_lshl_b32 s{sT2}, s{sU}, 2")
    a.I(f"v_add_u32 v6, s{sT2}, v6")
    a.I("v_lshlrev_b32 v6, 1, v6")
    a.I("buffer_load_ushort v36, v6, s[48:51], 0 offen", "B2")
    a.wait_vm("G")
    for e in range(4):
        a.I(f"v_lshlrev_b32 v37, 16, v{28+e}"); a.I(f"v_and_b32 v38, 0xffff0000, v{28+e}")
        a.I(f"v_lshlrev_b32 v39, 16, v{32+e}"); a.I(f"v_and_b32 v40, 0xffff0000, v{32+e}")
        a.I("v_mul_f32 v37, v37, v39"); a.I("v_mul_f32 v38, v38, v40")
        a.I(f"v_cvt_pk_bf16_f32 v{28+e}, v37, v38")
    for e in range(4):
        a.I(f"v_lshlrev_b32 v37, 16, v{28+e}"); a.I(f"v_and_b32 v38, 0xffff0000, v{28+e}")
        a.I(f"v_add_f32 v{28+e}, v37, v38")
    a.I("v_add_f32 v28, v28, v29"); a.I("v_add_f32 v30, v30, v31"); a.I("v_add_f32 v28, v28, v30")
    wave_reduce63(a, "v_add_f32", 28)
    a.I(f"v_readlane_b32 s{sT2}, v28, 63")
    a.I(f"v_mov_b32 v28, s{sT2}")
    a.I("v_cvt_pk_bf16_f32 v28, v28, v28")
    a.I("v_and_b32 v28, 0xffff0000, v28")
    a.I(f"v_mul_f32 v28, {hex(f2u(-1.4426950408889634))}, v28")
    a.I("v_exp_f32 v28, v28")
    a.I("v_add_f32 v28, 1.0, v28")
    a.I("v_rcp_f32 v28, v28")
    a.I("v_cvt_pk_bf16_f32 v28, v28, v28")
    a.I("v_and_b32 v28, 0xffff0000, v28")
    a.I("v_sub_f32 v29, 1.0, v28")
    a.I("v_cvt_pk_bf16_f32 v29, v29, v29")
    a.I("v_and_b32 v29, 0xffff0000, v29")
    for (m, l, t) in ((24, 25, 30), (26, 27, 31)):
        a.I(f"v_mov_b32 v{t}, v{m}")
    for c in ("quad_perm:[1,0,3,2]", "quad_perm:[2,3,0,1]", "row_half_mirror"):
        for t in (30, 31): a.I(dpp("v_max_f32", t, t, t, c))
    for (m, l, t) in ((24, 25, 30), (26, 27, 31)):
        a.I(f"v_sub_f32 v{m}, v{m}, v{t}")
        a.I(f"v_mul_f32 v{m}, {hex(f2u(C_SCALE))}, v{m}")
        a.I(f"v_exp_f32 v{m}, v{m}")
    for (m, l, t) in ((24, 25, 30), (26, 27, 31)):
        a.I(f"v_mul_f32 v{l}, v{l}, v{m}")
    for c in ("quad_perm:[1,0,3,2]", "quad_perm:[2,3,0,1]", "row_half_mirror"):
        for t in (25, 27): a.I(dpp("v_add_f32", t, t, t, c))
    for (m, l, t) in ((24, 25, 30), (26, 27, 31)):
        a.I(f"v_rcp_f32 v{l}, v{l}")
    for (m, l, t) in ((24, 25, 30), (26, 27, 31)):
        a.I(f"v_mul_f32 v{m}, v{m}, v{l}")
    for k in range(4):
        a.I(f"v_mul_f32 v{8+k}, v{8+k}, v24")
        a.I(f"v_add_f32 v{16+k}, v{16+k}, v{20+k}")
    for k in range(4):
        a.I(f"v_fmac_f32 v{8+k}, v{12+k}, v26")
    for b in (8, 16):
        a.I(f"v_permlane16_swap_b32 v{b}, v{b+1}"); a.I(f"v_permlane16_swap_b32 v{b+2}, v{b+3}")
    for b in (8, 16):
        a.I(f"v_add_f32 v{b}, v{b}, v{b+1}"); a.I(f"v_add_f32 v{b+2}, v{b+2}, v{b+3}")
    for b in (8, 16): a.I(f"v_permlane32_swap_b32 v{b}, v{b+2}")
    for b in (8, 16): a.I(f"v_add_f32 v{b}, v{b}, v{b+2}")
    for c in ("quad_perm:[1,0,3,2]", "quad_perm:[2,3,0,1]", "row_half_mirror", "row_mirror"):
        for t in (8, 16): a.I(dpp("v_add_f32", t, t, t, c))
    a.wait_vm("B2")
    a.I("v_cvt_pk_bf16_f32 v8, v8, v16")
    a.I("v_lshlrev_b32 v36, 16, v36")
    a.I("v_and_b32 v16, 0xffff0000, v8")
    a.I("v_lshlrev_b32 v8, 16, v8")
    a.I("v_add_f32 v16, v16, v36")
    a.I("v_cvt_pk_bf16_f32 v16, v16, v16")
    a.I("v_and_b32 v16, 0xffff0000, v16")
    a.I("v_mul_f32 v8, v8, v28")
    a.I("v_mul_f32 v16, v16, v29")
    a.I("v_cvt_pk_bf16_f32 v8, v8, v16")
    a.I("v_and_b32 v16, 0xffff0000, v8")
    a.I("v_lshlrev_b32 v8, 16, v8")
    a.I("v_add_f32 v8, v8, v16")
    a.I("v_cvt_pk_bf16_f32 v8, v8, v8")
    a.I("v_and_b32 v9, 15, v1")
    a.I("v_cmp_eq_u32 vcc, 0, v9")
    a.I("v_mov_b32 v9, 0x80000000")
    a.I("v_cndmask_b32 v6, v9, v6, vcc")
    a.I(f"s_mul_i32 s{sT}, s{sB}, 896")
    a.I(f"buffer_store_short v8, v6, s[52:55], s{sT} offen")

def kd(a, name, vg, sg):
    a.raw(f".amdhsa_kernel {name}")
    a.raw(f"  .amdhsa_next_free_vgpr {vg}"); a.raw(f"  .amdhsa_next_free_sgpr {sg}"); a.raw(f"  .amdhsa_accum_offset {(vg+3)//4*4}")
    a.raw("  .amdhsa_group_segment_fixed_size 0"); a.raw("  .amdhsa_kernarg_size 112"); a.raw("  .amdhsa_user_sgpr_count 2")
    a.raw("  .amdhsa_user_sgpr_kernarg_segment_ptr 1"); a.raw("  .amdhsa_system_sgpr_workgroup_id_x 1")
    a.raw("  .amdhsa_float_denorm_mode_32 3")
    a.raw(".end_amdhsa_kernel")

def main():
    ap = argparse.ArgumentParser()
    ap.add_argument("-o", default="k.s")
    ap.add_argument("--kvflags", default="nt")
    ap.add_argument("--wflags", default="")
    ap.add_argument("--stflags", default="")
    ap.add_argument("--ldflags", default="")
    ap.add_argument("--nk0", type=int, default=4)
    o = ap.parse_args()
    a = Asm()
    a.raw(HDR.rstrip("\n"))
    a.raw(f"; @launch kernel={KN} grid=(256,1,1) block=(512,1,1) lds={LDS_BYTES}")
    a.raw(f"; @launch kernel=k2_reduce_kernel grid=(224,1,1) block=(64,1,1) lds=0")
    a.raw('.amdgcn_target "amdgcn-amd-amdhsa--gfx950"')
    a.raw(".text")
    gen_main(a, o)
    gen_reduce(a, o)
    a.raw('.section .rodata,"a"'); a.raw(".p2align 6")
    kd(a, KN, 256, 102)
    a.raw(".p2align 6")
    kd(a, "k2_reduce_kernel", 48, 64)
    open(o.o, "w").write(a.text())
main()
```

```python
import sys, argparse, struct
from asmlib import Asm
KN = "gated_mix__mha_block_cached__dense_activation_squared_relu__decode_kernel"
HDR = open("gated_mix__mha_block_cached__dense_activation_squared_relu__decode.s.ref").read().split("; Override launch")[0]
def f2u(f): return struct.unpack("<I", struct.pack("<f", f))[0]
RP = 0
QS = 1536
MX = 2048
LW = 2080
PS = 2304
OA = 8192
OP = 16384
LDS_BYTES = 16384 + 32768
WS_EP = 0
WS_Q = 0x1000
WS_ML = 0x10000
WS_O = 0x20000
WS_PM = 0x100000
WS_END = 0x2C0000
WS_TS = 0x400000
C_SCALE = 0.0625 * 1.4426950408889634
OOB = "0x80000000"
SPIN = 1 << 20

def srd(a, d, p, nbytes):
    a.I(f"s_mov_b32 s{d}, s{p}"); a.I(f"s_mov_b32 s{d+1}, s{p+1}")
    a.I(f"s_mov_b32 s{d+2}, {nbytes}"); a.I(f"s_mov_b32 s{d+3}, 0x20000")
def dpp(op, d, s0, s1, ctrl, rm="0xf", bm="0xf"):
    return f"{op}_dpp v{d}, v{s0}, v{s1} {ctrl} row_mask:{rm} bank_mask:{bm}"
def wave_reduce63(a, op, vs):
    if isinstance(vs, int): vs = [vs]
    for c, rm in (("quad_perm:[1,0,3,2]", "0xf"), ("quad_perm:[2,3,0,1]", "0xf"), ("row_half_mirror", "0xf"), ("row_mirror", "0xf"),
                  ("row_bcast:15", "0xa"), ("row_bcast:31", "0xc")):
        for v in vs: a.I(dpp(op, v, v, v, c, rm=rm))

def gen(a, o):
    D = o.depth
    kvf, wf = o.kvflags, o.wflags
    nst = [0]
    VTS = 255
    def stamp():
        if not o.ts: return
        a.I("s_memrealtime s[98:99]")
        a.I("s_waitcnt lgkmcnt(0)"); a.smem = False; a.lg = []
        a.I(f"v_writelane_b32 v{VTS}, s98, {nst[0]}")
        nst[0] += 1
    sH, sB, sS, sJ, sROW, sT, sU, sSO, sSELL, sSELH, sTAG, sBH, sI16, sB1, sBT, sCOL, sCNT, sG, sOMG, sW = range(76, 96)
    sM3, sM4 = 100, 96
    a.raw(f".globl {KN}"); a.raw(".p2align 8"); a.raw(f".type {KN},@function"); a.raw(f"{KN}:")
    a.I("s_cmp_ge_u32 s2, 256")
    a.I("s_cbranch_scc1 L_end")
    a.I("s_load_dwordx8 s[4:11], s[0:1], 0")
    a.I("s_load_dwordx8 s[12:19], s[0:1], 32")
    a.I("s_load_dwordx8 s[20:27], s[0:1], 64")
    a.I("s_load_dwordx4 s[28:31], s[0:1], 96")
    a.I("v_lshrrev_b32 v6, 6, v0")
    a.I("v_and_b32 v1, 63, v0")
    a.I("v_readfirstlane_b32 s3, v6")
    a.I(f"s_and_b32 s{sH}, s2, 7")
    a.I(f"s_lshl_b32 s{sH}, s{sH}, 1")
    a.I(f"s_bfe_u32 s{sT}, s2, 0x10003")
    a.I(f"s_add_u32 s{sH}, s{sH}, s{sT}")
    a.I(f"s_bfe_u32 s{sB}, s2, 0x10004")
    a.I(f"s_lshr_b32 s{sS}, s2, 5")
    a.I(f"s_lshl_b32 s{sJ}, s{sH}, 3")
    a.I(f"s_add_u32 s{sJ}, s{sJ}, s{sS}")
    a.I(f"s_lshl_b32 s{sROW}, s{sB}, 7")
    a.I(f"s_add_u32 s{sROW}, s{sROW}, s{sJ}")
    a.I(f"s_lshl_b32 s{sT}, s{sROW}, 18")
    a.I(f"s_lshl_b32 s{sU}, s3, 12")
    a.I(f"s_add_u32 s{sT}, s{sT}, s{sU}")
    a.I("v_lshlrev_b32 v7, 4, v1")
    a.I(f"v_add_u32 v2, s{sT}, v7")
    a.I("s_waitcnt lgkmcnt(0)"); a.smem = False
    stamp()
    srd(a, 32, 6, 64 << 20)
    NB0 = 64
    pool = list(range(NB0, 252, 4))
    buf = {}
    def alloc(tag):
        r = pool.pop(0); buf[tag] = r; return r
    def free(tag): pool.append(buf.pop(tag))
    last_so = [None]
    def set_so(v):
        if v == 0: return "0"
        if last_so[0] != v:
            a.I(f"s_mov_b32 s{sSO}, {v}"); last_so[0] = v
        return f"s{sSO}"
    def issue(tag):
        kind, i = tag
        r = alloc(tag)
        if kind in ("K", "V"):
            so = set_so((i >> 2) * 32768)
            sr = "s[32:35]" if kind == "K" else "s[36:39]"
            a.I(f"buffer_load_dwordx4 v[{r}:{r+3}], v2, {sr}, {so} offen offset:{(i&3)*1024} {kvf}", tag)
        elif kind == "WQ":
            so = set_so(i * 32 * 8192)
            a.I(f"buffer_load_dwordx4 v[{r}:{r+3}], v3, s[40:43], {so} offen {wf}", tag)
        elif kind == "W1":
            so = set_so(i * 32 * 3584)
            a.I(f"buffer_load_dwordx4 v[{r}:{r+3}], v20, s[48:51], {so} offen {wf}", tag)
        elif kind == "WO":
            a.I(f"buffer_load_dwordx4 v[{r}:{r+3}], v4, s[44:47], 0 offen offset:{i*896} {wf}", tag)
        elif kind == "W2":
            a.I(f"buffer_load_dwordx4 v[{r}:{r+3}], v5, s[52:55], 0 offen offset:{i*896} {wf}", tag)
    stream = [("K", i) for i in range(32)] + [("V", i) for i in range(32)] + [("WO", i) for i in range(4)] + [("W2", i) for i in range(2)]
    nxt = [0]
    def slot():
        n = nxt[0]
        if n >= len(stream): return False
        if n >= D: a.wait_vm(stream[n - D])
        issue(stream[n]); nxt[0] += 1
        return True
    def landed(tag):
        return tag not in a.vm and stream.index(tag) < nxt[0]
    for _ in range(min(D, 4)): slot()
    srd(a, 36, 8, 64 << 20)
    srd(a, 56, 30, WS_TS + 0x20000 if o.ts else WS_END)
    srd(a, 40, 10, 448 * 8192)
    srd(a, 60, 4, 1792)
    srd(a, 48, 16, 448 * 3584)
    a.I("v_mov_b32 v21, 0")
    a.I(f"buffer_load_dword v32, v21, s[56:59], 0 offen offset:{WS_EP} sc1", "EP")
    a.I(f"s_lshl_b32 s{sBH}, s{sB}, 4")
    a.I(f"s_add_u32 s{sBH}, s{sBH}, s{sH}")
    a.I(f"s_lshl_b32 s{sI16}, s{sB}, 3")
    a.I(f"s_add_u32 s{sI16}, s{sI16}, s{sS}")
    a.I("v_lshrrev_b32 v23, 1, v1")
    a.I(f"s_lshl_b32 s{sT}, s3, 6")
    a.I(f"v_add_u32 v23, s{sT}, v23")
    a.I("v_and_b32 v24, 1, v1")
    a.I("v_lshlrev_b32 v24, 4, v24")
    a.I(f"s_lshl_b32 s{sT}, s{sH}, 9")
    a.I(f"s_lshl_b32 s{sU}, s{sI16}, 5")
    a.I(f"s_add_u32 s{sT}, s{sT}, s{sU}")
    a.I("v_lshl_add_u32 v3, v23, 13, v24")
    a.I(f"v_add_u32 v3, s{sT}, v3")
    issue(("WQ", 0)); issue(("WQ", 1))
    a.I("v_lshlrev_b32 v22, 1, v23")
    a.I(f"s_mul_i32 s{sT}, s{sB}, 896")
    a.I(f"s_sub_u32 s{sU}, 896, s{sT}")
    a.I(f"buffer_load_ushort v26, v22, s[60:63], s{sT} offen", ("X", 0))
    a.I(f"buffer_load_ushort v27, v22, s[60:63], s{sT} offen offset:64", ("X", 1))
    a.I(f"buffer_load_ushort v28, v22, s[60:63], s{sU} offen", ("X", 2))
    a.I(f"buffer_load_ushort v29, v22, s[60:63], s{sU} offen offset:64", ("X", 3))
    a.I("v_mul_u32_u24 v20, 0xe00, v23")
    a.I(f"s_lshl_b32 s{sT}, s{sJ}, 5")
    a.I(f"v_add3_u32 v20, v20, v24, s{sT}")
    issue(("W1", 0)); issue(("W1", 1))
    srd(a, 44, 12, 4096 * 896)
    srd(a, 52, 20, 1792 * 896)
    srd(a, 64, 24, 896)
    srd(a, 68, 22, 896)
    srd(a, 72, 26, 1792)
    a.I(f"s_min_u32 s{sT}, s{sJ}, 111")
    a.I(f"s_lshl_b32 s{sT}, s{sT}, 5")
    a.I(f"s_lshl_b32 s{sU}, s3, 2")
    a.I(f"s_add_u32 s{sT}, s{sT}, s{sU}")
    a.I(f"s_add_u32 s18, s18, s{sT}")
    a.I("s_addc_u32 s19, s19, 0")
    a.I(f"s_load_dword s{sB1}, s[18:19], 0")
    a.I("v_cmp_gt_u32 vcc, 56, v1")
    a.I(f"v_mov_b32 v25, {OOB}")
    a.I("v_cndmask_b32 v25, v25, v7, vcc")
    a.I(f"s_lshl_b32 s{sT}, s{sJ}, 3")
    a.I(f"s_add_u32 s{sT}, s{sT}, s3")
    a.I(f"s_mul_i32 s{sU}, s{sT}, 1792")
    a.I(f"v_add_u32 v5, s{sU}, v25")
    a.I(f"s_mul_i32 s{sU}, s{sT}, 3584")
    a.I(f"v_add_u32 v4, s{sU}, v25")
    a.I("v_lshrrev_b32 v6, 5, v1")
    a.I(f"s_mov_b32 s{sSELL}, 0x05040100")
    a.I(f"s_mov_b32 s{sSELH}, 0x07060302")
    a.I(f"s_mov_b32 s{sM3}, 0xcccccccc"); a.I(f"s_mov_b32 s{sM3+1}, 0xcccccccc")
    a.I(f"s_mov_b32 s{sM4}, 0xaaaaaaaa"); a.I(f"s_mov_b32 s{sM4+1}, 0xaaaaaaaa")
    a.I("s_cmp_ge_u32 s2, 112")
    a.I(f"s_cselect_b32 s{sBT}, 1, 0")
    a.I(f"s_mul_i32 s{sT}, s{sBT}, 112")
    a.I(f"s_sub_u32 s{sT}, s2, s{sT}")
    a.I(f"s_lshl_b32 s{sT}, s{sT}, 2")
    a.I(f"s_and_b32 s{sU}, s3, 3")
    a.I(f"s_add_u32 s{sCOL}, s{sT}, s{sU}")
    a.I(f"s_mul_i32 s{sT}, s{sBT}, 896")
    gx, gg = alloc("GX"), alloc("GG")
    a.I(f"buffer_load_dwordx4 v[{gx}:{gx+3}], v25, s[60:63], s{sT} offen", "GX")
    a.I(f"buffer_load_dwordx4 v[{gg}:{gg+3}], v25, s[64:67], 0 offen", "GG")
    a.I(f"s_lshl_b32 s{sT}, s{sCOL}, 1")
    a.I(f"buffer_load_ushort v33, v21, s[68:71], s{sT} offen", "B2")
    a.I("v_and_b32 v11, 1, v1")
    a.I("v_lshlrev_b32 v11, 3, v11")
    a.I("v_lshrrev_b32 v12, 4, v1")
    a.I("v_bfe_u32 v13, v1, 3, 1")
    a.I("v_lshl_add_u32 v12, v13, 2, v12")
    a.I("v_add_u32 v11, v11, v12")
    a.I(f"s_lshl_b32 s{sT}, s3, 2")
    a.I(f"v_lshl_add_u32 v34, v11, 5, s{sT}")
    a.I(f"v_mov_b32 v31, s{sT}")
    while nxt[0] < o.s_proj: slot()
    a.wait_vm(("W1", 1))
    a.I(f"v_readfirstlane_b32 s{sT}, v32")
    a.I(f"s_mul_i32 s{sTAG}, s{sT}, 0x9E3779B1")
    a.I(f"s_add_u32 s{sTAG}, s{sTAG}, 0x7F4A7C15")
    a.I(f"v_mov_b32 v32, s{sTAG}")
    for k in range(4): a.I(f"v_lshlrev_b32 v{36+k}, 16, v{26+k}")
    def proj(kind, xl, st):
        r0, r1 = buf[(kind, 0)], buf[(kind, 1)]
        for e in range(4):
            a.I(f"v_dot2_f32_bf16 v{8+2*e}, v{r0+e}, v{xl}, 0")
            a.I(f"v_dot2_f32_bf16 v{9+2*e}, v{r0+e}, v{xl+10}, 0")
        for e in range(4):
            a.I(f"v_dot2_f32_bf16 v{8+2*e}, v{r1+e}, v{xl+1}, v{8+2*e}")
            a.I(f"v_dot2_f32_bf16 v{9+2*e}, v{r1+e}, v{xl+11}, v{9+2*e}")
        for e in range(4): a.I(f"v_permlane16_swap_b32 v{8+2*e}, v{9+2*e}")
        for e in range(4): a.I(f"v_add_f32 v{8+2*e}, v{8+2*e}, v{9+2*e}")
        a.I("v_permlane32_swap_b32 v8, v10"); a.I("v_permlane32_swap_b32 v12, v14")
        a.I("v_add_f32 v8, v8, v10"); a.I("v_add_f32 v12, v12, v14")
        a.I(dpp("v_add_f32", 9, 8, 8, "row_ror:8", bm="0x3"))
        a.I(dpp("v_add_f32", 9, 12, 12, "row_ror:8", bm="0xc"))
        a.I(dpp("v_add_f32", 10, 9, 9, "row_shl:4", bm="0x5"))
        a.I(dpp("v_add_f32", 10, 9, 9, "row_shr:4", bm="0xa"))
        a.I(dpp("v_add_f32", 11, 10, 10, "quad_perm:[2,3,0,1]"))
        a.I(f"ds_write_b32 v34, v11 offset:{RP + st*512}")
    proj("WQ", 26, 0); proj("WQ", 28, 1); proj("W1", 26, 2)
    for t in (("WQ", 0), ("WQ", 1), ("W1", 0), ("W1", 1)): free(t)
    slot()
    a.wait_lg()
    a.I("s_barrier")
    a.I("v_and_b32 v20, 31, v1")
    a.I("v_lshlrev_b32 v21, 5, v20")
    a.I(f"ds_read_b128 v[8:11], v21 offset:{RP}", "r0")
    a.I(f"ds_read_b128 v[12:15], v21 offset:{RP+16}", "r1")
    a.I(f"s_lshl_b32 s{sT}, s3, 6")
    a.I(f"v_mov_b32 v22, s{sT}")
    for i in range(4): a.I(f"ds_read_b128 v[{36+4*i}:{39+4*i}], v22 offset:{RP + 1024 + i*16}", ("h2", i))
    a.I("v_lshrrev_b32 v23, 4, v20")
    a.I(f"v_xor_b32 v23, s{sB}, v23")
    a.I("v_lshlrev_b32 v23, 14, v23")
    a.I("v_and_b32 v24, 14, v1")
    a.I("v_lshl_add_u32 v23, v24, 2, v23")
    a.I(f"s_lshl_b32 s{sT}, s{sH}, 10")
    a.I(f"s_lshl_b32 s{sU}, s{sI16}, 6")
    a.I(f"s_add_u32 s{sT}, s{sT}, s{sU}")
    a.I(f"s_add_u32 s{sT}, s{sT}, {WS_Q}")
    a.I("v_and_b32 v24, 0x1e1, v0")
    a.I("v_cmp_eq_u32 vcc, 0x1c0, v24")
    a.I(f"v_mov_b32 v24, {OOB}")
    a.I("v_cndmask_b32 v23, v24, v23, vcc")
    a.wait_lg("r1")
    a.I("v_add_f32 v8, v8, v9"); a.I("v_add_f32 v10, v10, v11"); a.I("v_add_f32 v12, v12, v13"); a.I("v_add_f32 v14, v14, v15")
    a.I("v_add_f32 v8, v8, v10"); a.I("v_add_f32 v12, v12, v14"); a.I("v_add_f32 v8, v8, v12")
    a.I("v_mov_b32_dpp v9, v8 quad_perm:[1,0,3,2] row_mask:0xf bank_mask:0xf")
    a.I("v_cvt_pk_bf16_f32 v8, v8, v9")
    a.I("v_mov_b32 v9, v32")
    a.I(f"buffer_store_dwordx2 v[8:9], v23, s[56:59], s{sT} offen sc1", "QST")
    slot()
    a.wait_lg()
    for hh in range(2):
        x0, x1 = 36 + 8*hh, 40 + 8*hh
        a.I(f"v_add_f32 v{x0}, v{x0}, v{x0+1}"); a.I(f"v_add_f32 v{x0+2}, v{x0+2}, v{x0+3}")
        a.I(f"v_add_f32 v{x1}, v{x1}, v{x1+1}"); a.I(f"v_add_f32 v{x1+2}, v{x1+2}, v{x1+3}")
        a.I(f"v_add_f32 v{x0}, v{x0}, v{x0+2}"); a.I(f"v_add_f32 v{x1}, v{x1}, v{x1+2}")
        a.I(f"v_add_f32 v{x0}, v{x0}, v{x1}")
    a.I("v_cvt_pk_bf16_f32 v20, v36, v44")
    a.I(f"s_lshl_b32 s{sT}, s{sB1}, 16")
    a.I(f"s_and_b32 s{sU}, s{sB1}, 0xffff0000")
    a.I("v_lshlrev_b32 v21, 16, v20"); a.I("v_and_b32 v22, 0xffff0000, v20")
    a.I(f"v_add_f32 v21, s{sT}, v21"); a.I(f"v_add_f32 v22, s{sU}, v22")
    a.I("v_cvt_pk_bf16_f32 v20, v21, v22")
    a.I("v_lshlrev_b32 v21, 16, v20"); a.I("v_and_b32 v22, 0xffff0000, v20")
    a.I("v_max_f32 v21, 0, v21"); a.I("v_max_f32 v22, 0, v22")
    a.I("v_mul_f32 v21, v21, v21"); a.I("v_mul_f32 v22, v22, v22")
    a.I("v_cvt_pk_bf16_f32 v35, v21, v22")
    slot()
    a.wait_vm("B2")
    for e in range(4):
        a.I(f"v_lshlrev_b32 v20, 16, v{gx+e}"); a.I(f"v_and_b32 v21, 0xffff0000, v{gx+e}")
        a.I(f"v_lshlrev_b32 v22, 16, v{gg+e}"); a.I(f"v_and_b32 v23, 0xffff0000, v{gg+e}")
        a.I("v_mul_f32 v20, v20, v22"); a.I("v_mul_f32 v21, v21, v23")
        a.I(f"v_cvt_pk_bf16_f32 v{8+e}, v20, v21")
    for e in range(4):
        a.I(f"v_lshlrev_b32 v20, 16, v{8+e}"); a.I(f"v_and_b32 v21, 0xffff0000, v{8+e}")
        a.I(f"v_add_f32 v{8+e}, v20, v21")
    a.I("v_add_f32 v8, v8, v9"); a.I("v_add_f32 v10, v10, v11"); a.I("v_add_f32 v8, v8, v10")
    free("GX"); free("GG")
    slot()
    wave_reduce63(a, "v_add_f32", 8)
    a.I("v_cvt_pk_bf16_f32 v8, v8, v8")
    a.I("v_and_b32 v8, 0xffff0000, v8")
    a.I(f"v_mul_f32 v8, {hex(f2u(-1.4426950408889634))}, v8")
    a.I("v_exp_f32 v8, v8")
    a.I("v_add_f32 v8, 1.0, v8")
    a.I("v_rcp_f32 v8, v8")
    a.I("v_cvt_pk_bf16_f32 v8, v8, v8")
    a.I("v_and_b32 v8, 0xffff0000, v8")
    a.I("v_sub_f32 v9, 1.0, v8")
    a.I("v_cvt_pk_bf16_f32 v9, v9, v9")
    a.I("v_and_b32 v9, 0xffff0000, v9")
    a.I(f"v_readlane_b32 s{sG}, v8, 63")
    a.I(f"v_readlane_b32 s{sOMG}, v9, 63")
    a.I("v_lshlrev_b32 v33, 16, v33")
    stamp()
    while nxt[0] < o.s_poll: slot()
    a.I("v_cmp_gt_u32 vcc, 64, v0")
    a.I(f"v_mov_b32 v20, {OOB}")
    a.I("v_cndmask_b32 v20, v20, v7, vcc")
    a.I(f"s_lshl_b32 s{sW}, s{sBH}, 10")
    a.I(f"s_add_u32 s{sW}, s{sW}, {WS_Q}")
    a.I(f"buffer_load_dwordx4 v[8:11], v20, s[56:59], s{sW} offen sc1", "QP")
    for _ in range(D): slot()
    a.wait_vm("QP")
    a.I("s_cmp_lg_u32 s3, 0")
    a.I("s_cbranch_scc1 L_qdone")
    a.I(f"s_mov_b32 s{sCNT}, {SPIN}")
    a.label("L_qchk")
    a.I("v_cmp_eq_u32 vcc, v9, v32")
    a.I(f"v_cmp_eq_u32 s[{sT}:{sT+1}], v11, v32") if sT % 2 == 0 else None
    assert sT % 2 == 1
    a.I("v_cmp_eq_u32 s[98:99], v11, v32")
    a.I("s_and_b64 vcc, vcc, s[98:99]")
    a.I("s_cmp_eq_u64 vcc, -1")
    a.I("s_cbranch_scc1 L_qok")
    a.I(f"s_sub_u32 s{sCNT}, s{sCNT}, 1")
    a.I("s_cbranch_scc1 L_qok")
    a.I(f"buffer_load_dwordx4 v[8:11], v20, s[56:59], s{sW} offen sc1"); a.vm.pop()
    a.I("s_waitcnt vmcnt(0)")
    a.I("s_branch L_qchk")
    a.label("L_qok")
    a.I("v_mov_b32 v9, v10")
    a.I("v_lshlrev_b32 v20, 3, v1")
    a.I(f"ds_write_b64 v20, v[8:9] offset:{QS}")
    a.I("s_waitcnt lgkmcnt(0)"); a.lg = []
    a.label("L_qdone")
    a.I("s_barrier")
    stamp()
    a.I("v_and_b32 v24, 31, v1")
    a.I("v_lshlrev_b32 v24, 4, v24")
    a.I(f"ds_read_b128 v[16:19], v24 offset:{QS}", "q")
    a.I("v_lshlrev_b32 v28, 1, v24")
    a.I("v_lshl_add_u32 v28, v6, 4, v28")
    a.I(f"s_lshl_b32 s{sT}, s3, 10")
    a.I(f"v_add_u32 v28, s{sT}, v28")
    a.I(f"s_lshl_b32 s{sT}, s3, 12")
    a.I(f"v_lshl_add_u32 v29, v1, 6, s{sT}")
    slot()
    a.wait_lg()
    lvl = {}
    tfree = [20, 21, 22, 23, 26, 27, 8, 9, 10, 11, 12, 13]
    def merge(level, A, B):
        if level == 0:
            a.I(f"v_permlane16_swap_b32 v{A}, v{B}")
            a.I(f"v_add_f32 v{A}, v{A}, v{B}")
            tfree.append(B); return A
        if level in (1, 2):
            R = tfree.pop(0)
            if level == 1:
                a.I(dpp("v_add_f32", R, A, A, "row_ror:8", bm="0x3"))
                a.I(dpp("v_add_f32", R, B, B, "row_ror:8", bm="0xc"))
            else:
                a.I(dpp("v_add_f32", R, A, A, "row_shl:4", bm="0x5"))
                a.I(dpp("v_add_f32", R, B, B, "row_shr:4", bm="0xa"))
            tfree.extend([A, B]); return R
        q = "quad_perm:[2,3,0,1]" if level == 3 else "quad_perm:[1,0,3,2]"
        m = f"s[{sM3}:{sM3+1}]" if level == 3 else f"s[{sM4}:{sM4+1}]"
        a.I(dpp("v_add_f32", A, A, A, q))
        a.I(dpp("v_add_f32", B, B, B, q))
        a.I(f"v_cndmask_b32 v{A}, v{A}, v{B}, {m}")
        tfree.append(B); return A
    def kcons(i):
        a.wait_vm(("K", i))
        r = buf[("K", i)]
        t = tfree.pop(0)
        a.I(f"v_dot2_f32_bf16 v{t}, v{r}, v16, 0")
        for e in range(1, 4): a.I(f"v_dot2_f32_bf16 v{t}, v{r+e}, v{16+e}, v{t}")
        free(("K", i))
        L = 0
        while L in lvl:
            t = merge(L, lvl.pop(L), t); L += 1
        lvl[L] = t
    kd = 0
    while kd < 32:
        c = 0
        while kd < 32 and c < o.kps and landed(("K", kd)):
            kcons(kd); kd += 1; c += 1
        if kd < 32: slot()
    vS = lvl[5]
    a.I(f"v_cvt_pk_bf16_f32 v{vS}, v{vS}, v{vS}")
    a.I(f"v_and_b32 v30, 0xffff0000, v{vS}")
    a.I("v_mov_b32 v20, v30")
    wave_reduce63(a, "v_max_f32", 20)
    a.I(f"v_readlane_b32 s{sT}, v20, 63")
    a.I(f"v_mov_b32 v20, s{sT}")
    a.I(f"ds_write_b32 v31, v20 offset:{MX}")
    slot()
    a.wait_lg()
    stamp()
    a.I("s_barrier")
    a.I("v_mov_b32 v21, 0")
    a.I(f"ds_read_b128 v[8:11], v21 offset:{MX}")
    a.I(f"ds_read_b128 v[12:15], v21 offset:{MX+16}")
    a.I("v_bfrev_b32 v22, v1")
    a.I("v_bfe_u32 v22, v22, 27, 5")
    a.I("v_lshlrev_b32 v22, 2, v22")
    a.I(f"s_lshl_b32 s{sT}, s3, 8")
    a.I(f"v_lshl_add_u32 v23, v6, 7, s{sT}")
    a.I("v_add_u32 v22, v22, v23")
    a.wait_lg()
    a.I("v_max3_f32 v8, v8, v9, v10"); a.I("v_max3_f32 v12, v12, v13, v14"); a.I("v_max3_f32 v8, v8, v11, v15")
    a.I("v_max_f32 v34, v8, v12")
    a.I("v_sub_f32 v20, v30, v34")
    a.I(f"v_mul_f32 v20, {hex(f2u(C_SCALE))}, v20")
    a.I("v_exp_f32 v20, v20")
    a.I(f"ds_write_b32 v22, v20 offset:{PS}")
    a.I("v_mov_b32 v21, v20")
    wave_reduce63(a, "v_add_f32", 21)
    a.I(f"v_readlane_b32 s{sT}, v21, 63")
    a.I(f"v_mov_b32 v21, s{sT}")
    a.I(f"ds_write_b32 v31, v21 offset:{LW}")
    slot()
    a.wait_lg()
    a.I("s_barrier")
    a.I("v_mov_b32 v21, 0")
    a.I(f"ds_read_b128 v[36:39], v21 offset:{LW}", "l0")
    a.I(f"ds_read_b128 v[40:43], v21 offset:{LW+16}", "l1")
    PB = [16, 24]
    a.I(f"ds_read_b128 v[16:19], v23 offset:{PS}", ("p", 0))
    a.I("v_cmp_eq_u32 vcc, 0x180, v0")
    a.I(f"v_mov_b32 v22, {OOB}")
    a.I("v_cndmask_b32 v22, v22, v21, vcc")
    a.I(f"s_lshl_b32 s{sT}, s{sROW}, 4")
    a.I(f"s_add_u32 s{sT}, s{sT}, {WS_ML}")
    a.wait_lg("l1")
    a.I("v_add_f32 v36, v36, v37"); a.I("v_add_f32 v38, v38, v39"); a.I("v_add_f32 v40, v40, v41"); a.I("v_add_f32 v42, v42, v43")
    a.I("v_add_f32 v36, v36, v38"); a.I("v_add_f32 v40, v40, v42"); a.I("v_add_f32 v38, v36, v40")
    a.I("v_mov_b32 v36, v34"); a.I("v_mov_b32 v37, v32"); a.I("v_mov_b32 v39, v32")
    a.I(f"buffer_store_dwordx4 v[36:39], v22, s[56:59], s{sT} offen sc1", "MLST")
    def vcons(i):
        if i % 4 == 0:
            c = i // 4
            if c + 1 < 8:
                nb = PB[(c + 1) & 1]
                a.I(f"ds_read_b128 v[{nb}:{nb+3}], v23 offset:{PS + (c+1)*16}", ("p", c + 1))
            a.wait_lg(("p", c))
        a.wait_vm(("V", i))
        r = buf[("V", i)]
        p = PB[(i // 4) & 1] + (i % 4)
        for e in range(4):
            a.I(f"v_lshlrev_b32 v20, 16, v{r+e}")
            a.I(f"v_and_b32 v21, 0xffff0000, v{r+e}")
            op = "v_mul_f32" if i == 0 else "v_fmac_f32"
            a.I(f"{op} v{8+2*e}, v20, v{p}")
            a.I(f"{op} v{9+2*e}, v21, v{p}")
        free(("V", i))
    vd = 0
    mlstate = 0
    while vd < 32:
        c = 0
        while vd < 32 and c < o.vps and (landed(("V", vd)) or nxt[0] >= len(stream)):
            vcons(vd); vd += 1; c += 1
        if mlstate == 0 and nxt[0] >= o.s_ml:
            a.I("v_and_b32 v22, 0x1b8, v0")
            a.I("v_cmp_eq_u32 vcc, 0, v22")
            a.I(f"v_mov_b32 v22, {OOB}")
            a.I("v_cndmask_b32 v22, v22, v7, vcc")
            a.I(f"s_lshl_b32 s{sW}, s{sBH}, 7")
            a.I(f"s_add_u32 s{sW}, s{sW}, {WS_ML}")
            a.I(f"buffer_load_dwordx4 v[36:39], v22, s[56:59], s{sW} offen sc1", "MLP")
            mlstate = 1
        elif mlstate == 1 and "MLP" not in a.vm:
            a.I("s_cmp_ge_u32 s3, 2")
            a.I("s_cbranch_scc1 L_mldone")
            a.I(f"s_mov_b32 s{sCNT}, {SPIN}")
            a.label("L_mlchk")
            a.I("v_cmp_eq_u32 vcc, v37, v32")
            a.I("v_cmp_eq_u32 s[98:99], v39, v32")
            a.I("s_and_b32 s98, vcc_lo, s98")
            a.I("s_and_b32 s98, s98, 0xff")
            a.I("s_cmp_eq_u32 s98, 0xff")
            a.I("s_cbranch_scc1 L_mlok")
            a.I(f"s_sub_u32 s{sCNT}, s{sCNT}, 1")
            a.I("s_cbranch_scc1 L_mlok")
            a.I(f"buffer_load_dwordx4 v[36:39], v22, s[56:59], s{sW} offen sc1"); a.vm.pop()
            a.I("s_waitcnt vmcnt(0)")
            a.I("s_branch L_mlchk")
            a.label("L_mlok")
            a.I("v_mov_b32 v37, v36")
            for cc in ("quad_perm:[1,0,3,2]", "quad_perm:[2,3,0,1]", "row_half_mirror"):
                a.I(dpp("v_max_f32", 37, 37, 37, cc))
            a.I("v_sub_f32 v36, v36, v37")
            a.I("v_sub_f32 v39, v34, v37")
            a.I(f"v_mul_f32 v36, {hex(f2u(C_SCALE))}, v36")
            a.I(f"v_mul_f32 v39, {hex(f2u(C_SCALE))}, v39")
            a.I("v_exp_f32 v36, v36")
            a.I("v_exp_f32 v39, v39")
            a.I("v_mul_f32 v38, v38, v36")
            for cc in ("quad_perm:[1,0,3,2]", "quad_perm:[2,3,0,1]", "row_half_mirror"):
                a.I(dpp("v_add_f32", 38, 38, 38, cc))
            a.I("v_rcp_f32 v38, v38")
            a.I("v_mul_f32 v38, v38, v39")
            a.I(f"v_readfirstlane_b32 s{sW}, v38")
            a.label("L_mldone")
            mlstate = 2
        slot()
    assert mlstate == 2
    while slot(): pass
    stamp()
    for k in range(4): a.I(f"v_permlane32_swap_b32 v{8+k}, v{12+k}")
    for k in range(4): a.I(f"v_add_f32 v{8+k}, v{8+k}, v{12+k}")
    a.I(f"ds_write_b128 v28, v[8:11] offset:{OA}")
    a.I("v_lshrrev_b32 v20, 1, v0")
    a.I("v_and_b32 v21, 1, v0")
    a.I("v_lshlrev_b32 v21, 4, v21")
    a.I("v_lshl_add_u32 v20, v20, 8, v21")
    a.I(f"s_lshl_b32 s{sT}, s{sBH}, 14")
    a.I(f"s_lshl_b32 s{sU}, s{sS}, 5")
    a.I(f"s_add_u32 s{sT}, s{sT}, s{sU}")
    a.I(f"s_add_u32 s{sT}, s{sT}, {WS_O}")
    a.I("v_lshlrev_b32 v21, 3, v0")
    a.I("v_cmp_gt_u32 vcc, 16, v1")
    a.I(f"v_mov_b32 v22, {OOB}")
    a.I("v_cndmask_b32 v22, v22, v7, vcc")
    a.I(f"s_lshl_b32 s{sU}, s{sROW}, 3")
    a.I(f"s_add_u32 s{sU}, s{sU}, s3")
    a.I(f"s_lshl_b32 s{sU}, s{sU}, 8")
    a.I(f"s_add_u32 s{sU}, s{sU}, {WS_O}")
    a.wait_lg()
    a.I("s_barrier")
    a.I("s_cmp_ge_u32 s3, 2")
    a.I("s_cbranch_scc1 L_odone")
    for w in range(8): a.I(f"ds_read_b64 v[{36+2*w}:{37+2*w}], v21 offset:{OA + w*1024}", ("o8", w))
    for lv in (1, 2, 4):
        for w in range(0, 8, 2*lv):
            if lv == 1: a.wait_lg(("o8", w + 1))
            for k in range(2): a.I(f"v_add_f32 v{36+2*w+k}, v{36+2*w+k}, v{36+2*(w+lv)+k}")
    a.I(f"v_mul_f32 v38, s{sW}, v37")
    a.I(f"v_mul_f32 v36, s{sW}, v36")
    a.I("v_mov_b32 v37, v32"); a.I("v_mov_b32 v39, v32")
    a.I(f"buffer_store_dwordx4 v[36:39], v20, s[56:59], s{sT} offen sc1"); a.vm.pop()
    a.label("L_odone")
    a.I(f"buffer_load_dwordx4 v[16:19], v22, s[56:59], s{sU} offen sc1", "OPOLL")
    stamp()
    a.wait_vm(("WO", 3))
    wp = {}
    spare = [30]
    for j in range(2):
        A = [buf[("WO", 2*j)] + e for e in range(4)]; B = [buf[("WO", 2*j+1)] + e for e in range(4)]
        out = []
        for e in range(4):
            t = spare.pop(0)
            a.I(f"v_perm_b32 v{t}, v{B[e]}, v{A[e]}, s{sSELL}")
            a.I(f"v_perm_b32 v{B[e]}, v{B[e]}, v{A[e]}, s{sSELH}")
            spare.append(A[e]); out += [t, B[e]]
        wp[j] = out
    a.wait_vm(("W2", 1))
    A = [buf[("W2", 0)] + e for e in range(4)]; B = [buf[("W2", 1)] + e for e in range(4)]
    for e in range(4):
        a.I(f"v_perm_b32 v20, v{B[e]}, v{A[e]}, s{sSELL}")
        a.I(f"v_perm_b32 v21, v{B[e]}, v{A[e]}, s{sSELH}")
        a.I(f"v_dot2_f32_bf16 v{41+4*e}, v20, v35, 0")
        a.I(f"v_dot2_f32_bf16 v{43+4*e}, v21, v35, 0")
    a.wait_vm("OPOLL")
    a.I(f"s_mov_b32 s{sCNT}, {SPIN}")
    a.label("L_ochk")
    a.I("v_cmp_eq_u32 vcc, v17, v32")
    a.I("v_cmp_eq_u32 s[98:99], v19, v32")
    a.I("s_and_b32 s98, vcc_lo, s98")
    a.I("s_and_b32 s98, s98, 0xffff")
    a.I("s_cmp_eq_u32 s98, 0xffff")
    a.I("s_cbranch_scc1 L_ook")
    a.I(f"s_sub_u32 s{sCNT}, s{sCNT}, 1")
    a.I("s_cbranch_scc1 L_ook")
    a.I(f"buffer_load_dwordx4 v[16:19], v22, s[56:59], s{sU} offen sc1"); a.vm.pop()
    a.I("s_waitcnt vmcnt(0)")
    a.I("s_branch L_ochk")
    a.label("L_ook")
    stamp()
    a.I(dpp("v_add_f32", 16, 16, 16, "quad_perm:[2,3,0,1]"))
    a.I(dpp("v_add_f32", 18, 18, 18, "quad_perm:[2,3,0,1]"))
    a.I(dpp("v_add_f32", 16, 16, 16, "row_ror:4"))
    a.I(dpp("v_add_f32", 18, 18, 18, "row_ror:4"))
    a.I(dpp("v_add_f32", 16, 16, 16, "row_ror:8"))
    a.I(dpp("v_add_f32", 18, 18, 18, "row_ror:8"))
    a.I("v_cvt_pk_bf16_f32 v16, v16, v18")
    a.I(f"v_readlane_b32 s{sT}, v16, 0")
    a.I(f"v_readlane_b32 s{sU}, v16, 1")
    for c in range(8): a.I(f"v_dot2_f32_bf16 v{40+2*c}, v{wp[0][c]}, s{sT}, 0")
    for c in range(8): a.I(f"v_dot2_f32_bf16 v{40+2*c}, v{wp[1][c]}, s{sU}, v{40+2*c}")
    for k in range(4): a.I(f"ds_write_b128 v29, v[{40+4*k}:{43+4*k}] offset:{OP + 16*k}")
    a.I("v_lshlrev_b32 v21, 3, v0")
    a.I("v_lshlrev_b32 v20, 11, v0")
    a.I("v_cmp_gt_u32 vcc, 0x1c0, v0")
    a.I(f"v_mov_b32 v22, {OOB}")
    a.I("v_cndmask_b32 v20, v22, v20, vcc")
    a.I(f"s_mul_i32 s{sT}, s{sB}, {448*2048}")
    a.I(f"s_lshl_b32 s{sU}, s{sJ}, 4")
    a.I(f"s_add_u32 s{sT}, s{sT}, s{sU}")
    a.I(f"s_add_u32 s{sT}, s{sT}, {WS_PM}")
    a.wait_lg()
    a.I("s_barrier")
    for w in range(8): a.I(f"ds_read_b64 v[{36+2*w}:{37+2*w}], v21 offset:{OP + w*4096}", ("p8", w))
    for lv in (1, 2, 4):
        for w in range(0, 8, 2*lv):
            if lv == 1: a.wait_lg(("p8", w + 1))
            for k in range(2): a.I(f"v_add_f32 v{36+2*w+k}, v{36+2*w+k}, v{36+2*(w+lv)+k}")
    a.I("v_mov_b32 v38, v37"); a.I("v_mov_b32 v37, v32"); a.I("v_mov_b32 v39, v32")
    a.I(f"buffer_store_dwordx4 v[36:39], v20, s[56:59], s{sT} offen sc1", "PST")
    stamp()
    a.I("s_cmp_lt_u32 s3, 4")
    a.I("s_cbranch_scc1 L_fin")
    a.I("s_cmp_ge_u32 s2, 224")
    a.I("s_cbranch_scc1 L_fin")
    a.I(f"s_mul_i32 s{sT}, s{sBT}, 448")
    a.I(f"s_add_u32 s{sT}, s{sT}, s{sCOL}")
    a.I(f"s_lshl_b32 s{sU}, s{sT}, 11")
    a.I(f"s_add_u32 s{sU}, s{sU}, {WS_PM}")
    a.I(f"s_mov_b32 s{sCNT}, {SPIN}")
    a.label("L_rpoll")
    a.I(f"buffer_load_dwordx4 v[8:11], v7, s[56:59], s{sU} offen sc1")
    a.I(f"buffer_load_dwordx4 v[12:15], v7, s[56:59], s{sU} offen offset:1024 sc1")
    a.I("s_waitcnt vmcnt(0)"); a.vm = []
    a.I("v_xor_b32 v16, v9, v32"); a.I("v_xor_b32 v17, v11, v32"); a.I("v_xor_b32 v18, v13, v32"); a.I("v_xor_b32 v19, v15, v32")
    a.I("v_or3_b32 v16, v16, v17, v18")
    a.I("v_or_b32 v16, v16, v19")
    a.I("v_cmp_ne_u32 vcc, 0, v16")
    a.I("s_cmp_eq_u64 vcc, 0")
    a.I("s_cbranch_scc1 L_rok")
    a.I(f"s_sub_u32 s{sCNT}, s{sCNT}, 1")
    a.I("s_cbranch_scc0 L_rpoll")
    a.label("L_rok")
    a.I("v_add_f32 v8, v8, v12"); a.I("v_add_f32 v10, v10, v14")
    wave_reduce63(a, "v_add_f32", [8, 10])
    a.I("v_cvt_pk_bf16_f32 v8, v8, v10")
    a.I("v_and_b32 v10, 0xffff0000, v8")
    a.I("v_lshlrev_b32 v8, 16, v8")
    a.I("v_add_f32 v10, v10, v33")
    a.I("v_cvt_pk_bf16_f32 v10, v10, v10")
    a.I("v_and_b32 v10, 0xffff0000, v10")
    a.I(f"v_mul_f32 v8, s{sG}, v8")
    a.I(f"v_mul_f32 v10, s{sOMG}, v10")
    a.I("v_cvt_pk_bf16_f32 v8, v8, v10")
    a.I("v_and_b32 v10, 0xffff0000, v8")
    a.I("v_lshlrev_b32 v8, 16, v8")
    a.I("v_add_f32 v8, v8, v10")
    a.I("v_cvt_pk_bf16_f32 v8, v8, v8")
    a.I("v_cmp_eq_u32 vcc, 63, v1")
    a.I(f"v_mov_b32 v9, {OOB}")
    a.I("v_cndmask_b32 v9, v9, 0, vcc")
    a.I(f"s_lshl_b32 s{sU}, s{sT}, 1")
    a.I(f"buffer_store_short v8, v9, s[72:75], s{sU} offen")
    a.I(f"s_cmp_lg_u32 s{sT}, 0")
    a.I("s_cbranch_scc1 L_fin")
    a.I(f"buffer_store_dword v32, v9, s[56:59], 0 offen offset:{WS_EP} sc1")
    a.label("L_fin")
    if o.ts:
        stamp()
        a.I("s_getreg_b32 s98, hwreg(HW_REG_XCC_ID)")
        a.I(f"v_writelane_b32 v{VTS}, s98, 15")
        a.I("v_cmp_gt_u32 vcc, 16, v1")
        a.I(f"v_mov_b32 v21, {OOB}")
        a.I("v_lshlrev_b32 v20, 2, v1")
        a.I("v_cndmask_b32 v20, v21, v20, vcc")
        a.I("s_lshl_b32 s98, s2, 3"); a.I("s_add_u32 s98, s98, s3"); a.I("s_lshl_b32 s98, s98, 6")
        a.I(f"s_add_u32 s98, s98, {WS_TS}")
        a.I(f"buffer_store_dword v{VTS}, v20, s[56:59], s98 offen")
    a.label("L_end")
    a.I("s_endpgm")

def main():
    ap = argparse.ArgumentParser()
    ap.add_argument("-o", default="k.s")
    ap.add_argument("--kvflags", default="nt")
    ap.add_argument("--wflags", default="")
    ap.add_argument("--depth", type=int, default=4)
    ap.add_argument("--s_proj", type=int, default=8)
    ap.add_argument("--s_poll", type=int, default=16)
    ap.add_argument("--s_ml", type=int, default=54)
    ap.add_argument("--kps", type=int, default=3)
    ap.add_argument("--vps", type=int, default=2)
    ap.add_argument("--ts", type=int, default=0)
    o = ap.parse_args()
    a = Asm()
    a.raw(HDR.rstrip("\n"))
    a.raw(f"; @launch grid=(256,1,1) block=(512,1,1) lds={LDS_BYTES}")
    a.raw('.amdgcn_target "amdgcn-amd-amdhsa--gfx950"')
    a.raw(".text")
    gen(a, o)
    a.raw('.section .rodata,"a"'); a.raw(".p2align 6")
    a.raw(f".amdhsa_kernel {KN}")
    a.raw("  .amdhsa_next_free_vgpr 256"); a.raw("  .amdhsa_next_free_sgpr 102"); a.raw("  .amdhsa_accum_offset 256")
    a.raw("  .amdhsa_group_segment_fixed_size 0"); a.raw("  .amdhsa_kernarg_size 112"); a.raw("  .amdhsa_user_sgpr_count 2")
    a.raw("  .amdhsa_user_sgpr_kernarg_segment_ptr 1"); a.raw("  .amdhsa_system_sgpr_workgroup_id_x 1")
    a.raw("  .amdhsa_float_denorm_mode_32 3")
    a.raw(".end_amdhsa_kernel")
    open(o.o, "w").write(a.text())
main()
```

```python
import sys, argparse, struct
from asmlib import Asm
KN = "gated_mix__mha_block_cached__dense_activation_squared_relu__decode_kernel"
HDR = open("gated_mix__mha_block_cached__dense_activation_squared_relu__decode.s.ref").read().split("; Override launch")[0]
def f2u(f): return struct.unpack("<I", struct.pack("<f", f))[0]
QS = 0
MX = 512
LW = 544
RM = 576
RF = 3072
PS = 28672
RP = 4096
OA = 4096
OP = 12288
LDS_BYTES = 12288 + 16384 + 2048
WS_EP = 0
WS_ML = 0x8000
WS_Q = 0x10000
WS_H = 0x50000
WS_O = 0x90000
WS_O2 = 0x110000
WS_M = 0x190000
WS_P = 0x270000
WS_END = 0x350000
WS_TS = 0x400000
C_SCALE = 0.0625 * 1.4426950408889634
OOB = "0x80000000"
SPIN = 1 << 20

def srd(a, d, p, nbytes):
    a.I(f"s_mov_b32 s{d}, s{p}"); a.I(f"s_mov_b32 s{d+1}, s{p+1}")
    a.I(f"s_mov_b32 s{d+2}, {nbytes}"); a.I(f"s_mov_b32 s{d+3}, 0x20000")
def dpp(op, d, s0, s1, ctrl, rm="0xf", bm="0xf"):
    return f"{op}_dpp v{d}, v{s0}, v{s1} {ctrl} row_mask:{rm} bank_mask:{bm}"
def wave_reduce63(a, op, vs):
    if isinstance(vs, int): vs = [vs]
    for c, rm in (("quad_perm:[1,0,3,2]", "0xf"), ("quad_perm:[2,3,0,1]", "0xf"), ("row_half_mirror", "0xf"), ("row_mirror", "0xf"),
                  ("row_bcast:15", "0xa"), ("row_bcast:31", "0xc")):
        for v in vs: a.I(dpp(op, v, v, v, c, rm=rm))

def gen(a, o):
    D = o.depth
    kvf, wf = o.kvflags, o.wflags
    nst = [0]
    VTS = 255
    def stamp():
        if not o.ts: return
        a.I("s_memrealtime s[98:99]")
        a.I("s_waitcnt lgkmcnt(0)"); a.smem = False; a.lg = []
        a.I(f"v_writelane_b32 v{VTS}, s98, {nst[0]}")
        nst[0] += 1
    (sH, sB, sS, sJ, sROW, sT, sU, sSO, sSELL, sSELH, sTAG, sBH, sB1, sBT, sTASK, sCNT, sG, sOMG, sW, sRED) = range(76, 96)
    sM3, sM4 = 100, 96
    vLANE, vKV, vWO, vW2, vHI, vL16 = 1, 2, 4, 5, 6, 7
    vW4, vTAG, vB2, vMS, vHH, vOAW, vOPW, vBM0, vBM1 = 31, 32, 33, 34, 35, 28, 29, 56, 57
    a.raw(f".globl {KN}"); a.raw(".p2align 8"); a.raw(f".type {KN},@function"); a.raw(f"{KN}:")
    a.I("s_cmp_ge_u32 s2, 256")
    a.I("s_cbranch_scc1 L_end")
    a.I("s_load_dwordx8 s[4:11], s[0:1], 0")
    a.I("s_load_dwordx8 s[12:19], s[0:1], 32")
    a.I("s_load_dwordx8 s[20:27], s[0:1], 64")
    a.I("s_load_dwordx4 s[28:31], s[0:1], 96")
    a.I("v_lshrrev_b32 v6, 6, v0")
    a.I("v_and_b32 v1, 63, v0")
    a.I("v_readfirstlane_b32 s3, v6")
    a.I(f"s_and_b32 s{sH}, s2, 7")
    a.I(f"s_lshl_b32 s{sH}, s{sH}, 1")
    a.I(f"s_bfe_u32 s{sT}, s2, 0x10003")
    a.I(f"s_add_u32 s{sH}, s{sH}, s{sT}")
    a.I(f"s_bfe_u32 s{sB}, s2, 0x10004")
    a.I(f"s_lshr_b32 s{sS}, s2, 5")
    a.I(f"s_lshl_b32 s{sJ}, s{sH}, 3")
    a.I(f"s_add_u32 s{sJ}, s{sJ}, s{sS}")
    a.I(f"s_lshl_b32 s{sROW}, s{sB}, 7")
    a.I(f"s_add_u32 s{sROW}, s{sROW}, s{sJ}")
    a.I(f"s_lshl_b32 s{sT}, s{sROW}, 18")
    a.I(f"s_mul_i32 s{sU}, s3, {o.gran}")
    a.I(f"s_add_u32 s{sT}, s{sT}, s{sU}")
    a.I("v_lshlrev_b32 v7, 4, v1")
    a.I(f"v_add_u32 v2, s{sT}, v7")
    a.I("s_mov_b32 s34, 0x4000000"); a.I("s_mov_b32 s35, 0x20000")
    a.I("s_waitcnt lgkmcnt(0)"); a.smem = False
    stamp()
    a.I("s_mov_b32 s32, s6"); a.I("s_mov_b32 s33, s7")
    NB0 = 64
    pool = list(range(NB0, 252, 4))
    buf = {}
    def alloc(tag):
        r = pool.pop(0); buf[tag] = r; return r
    def free(tag): pool.append(buf.pop(tag))
    last_so = [None]
    def set_so(v):
        if v == 0: return "0"
        if last_so[0] != v:
            a.I(f"s_mov_b32 s{sSO}, {v}"); last_so[0] = v
        return f"s{sSO}"
    def issue(tag):
        kind, i = tag
        r = alloc(tag)
        if kind in ("K", "V"):
            lpc = o.gran // 1024
            off = (i // lpc) * 8 * o.gran + (i % lpc) * 1024
            so = set_so(off & ~4095)
            sr = "s[32:35]" if kind == "K" else "s[36:39]"
            a.I(f"buffer_load_dwordx4 v[{r}:{r+3}], v2, {sr}, {so} offen offset:{off & 4095} {kvf}", tag)
        elif kind == "WQ":
            so = set_so(i * 8 * 8192)
            a.I(f"buffer_load_dwordx4 v[{r}:{r+3}], v3, s[40:43], {so} offen {o.pflags}", tag)
        elif kind == "W1":
            a.I(f"buffer_load_dwordx4 v[{r}:{r+3}], v20, s[48:51], 0 offen {o.pflags}", tag)
        elif kind == "WO":
            a.I(f"buffer_load_dwordx4 v[{r}:{r+3}], v4, s[44:47], 0 offen offset:{i*896} {wf}", tag)
        elif kind == "W2":
            a.I(f"buffer_load_dwordx4 v[{r}:{r+3}], v5, s[52:55], 0 offen offset:{i*896} {wf}", tag)
    stream = [("K", i) for i in range(32)] + [("V", i) for i in range(32)]
    stream[o.s_w2:o.s_w2] = [("W2", 0), ("W2", 1)]
    pos = len(stream) - o.wo_early
    stream[pos:pos] = [("WO", i) for i in range(4)]
    nxt = [0]
    def slot():
        n = nxt[0]
        if n >= len(stream): return False
        if n >= D: a.wait_vm(stream[n - D])
        issue(stream[n]); nxt[0] += 1
        return True
    def landed(tag):
        return tag not in a.vm and stream.index(tag) < nxt[0]
    for _ in range(min(D, 4)): slot()
    srd(a, 40, 10, 448 * 8192)
    srd(a, 48, 16, 448 * 3584)
    srd(a, 60, 4, 1792)
    sCG, sRG, sCG1, sRG1 = sG, sOMG, sW, sRED
    a.I(f"s_and_b32 s{sCG}, s{sS}, 3")
    a.I(f"s_lshr_b32 s{sRG}, s{sS}, 2")
    a.I(f"s_lshl_b32 s{sT}, s{sB}, 1")
    a.I(f"s_add_u32 s{sRG}, s{sRG}, s{sT}")
    a.I(f"s_and_b32 s{sRG1}, s2, 7")
    a.I(f"s_lshr_b32 s{sCG1}, s2, 3")
    a.I("v_lshrrev_b32 v23, 3, v1")
    a.I("v_and_b32 v24, 7, v1")
    a.I("v_lshlrev_b32 v24, 4, v24")
    a.I(f"s_mul_i32 s{sT}, s{sRG}, 112")
    a.I(f"s_lshl_b32 s{sU}, s3, 4")
    a.I(f"s_add_u32 s{sT}, s{sT}, s{sU}")
    a.I(f"v_add_u32 v21, s{sT}, v23")
    a.I(f"s_lshl_b32 s{sT}, s{sH}, 9")
    a.I(f"s_lshl_b32 s{sU}, s{sCG}, 7")
    a.I(f"s_add_u32 s{sT}, s{sT}, s{sU}")
    a.I("s_cmp_eq_u32 s3, 7")
    a.I(f"s_cselect_b32 s{sT}, {OOB}, s{sT}")
    a.I("v_lshl_add_u32 v3, v21, 13, v24")
    a.I(f"v_add_u32 v3, s{sT}, v3")
    issue(("WQ", 0)); issue(("WQ", 1))
    a.I(f"s_mul_i32 s{sT}, s{sRG1}, 56")
    a.I(f"s_lshl_b32 s{sU}, s3, 3")
    a.I(f"s_add_u32 s{sT}, s{sT}, s{sU}")
    a.I(f"v_add_u32 v22, s{sT}, v23")
    a.I(f"s_lshl_b32 s{sT}, s{sCG1}, 7")
    a.I("s_cmp_eq_u32 s3, 7")
    a.I(f"s_cselect_b32 s{sT}, {OOB}, s{sT}")
    a.I("s_cmp_ge_u32 s2, 224")
    a.I(f"s_cselect_b32 s{sT}, {OOB}, s{sT}")
    a.I("v_mul_u32_u24 v20, 0xe00, v22")
    a.I(f"v_add3_u32 v20, v20, v24, s{sT}")
    issue(("W1", 0))
    a.I("v_lshlrev_b32 v21, 1, v21")
    a.I("v_lshlrev_b32 v22, 1, v22")
    for r, va, off in ((36, 21, 0), (37, 21, 16), (38, 21, 896), (39, 21, 912), (40, 22, 0), (41, 22, 896)):
        a.I(f"buffer_load_ushort v{r}, v{va}, s[60:63], 0 offen offset:{off}", ("X", r))
    srd(a, 56, 30, WS_TS + 0x20000 if o.ts else WS_END)
    a.I("v_mov_b32 v21, 0")
    a.I(f"buffer_load_dword v32, v21, s[56:59], 0 offen offset:{WS_EP} sc1", "EP")
    srd(a, 36, 8, 64 << 20)
    srd(a, 44, 12, 4096 * 896)
    srd(a, 52, 20, 1792 * 896)
    srd(a, 64, 24, 896)
    srd(a, 68, 22, 896)
    srd(a, 72, 26, 1792)
    a.I(f"s_lshl_b32 s{sBH}, s{sB}, 4")
    a.I(f"s_add_u32 s{sBH}, s{sBH}, s{sH}")
    a.I(f"s_min_u32 s{sT}, s{sJ}, 111")
    a.I(f"s_lshl_b32 s{sT}, s{sT}, 5")
    a.I(f"s_lshl_b32 s{sU}, s3, 2")
    a.I(f"s_add_u32 s{sT}, s{sT}, s{sU}")
    a.I(f"s_add_u32 s18, s18, s{sT}")
    a.I("s_addc_u32 s19, s19, 0")
    a.I(f"s_load_dword s{sB1}, s[18:19], 0")
    a.I("v_cmp_gt_u32 vcc, 56, v1")
    a.I(f"v_mov_b32 v25, {OOB}")
    a.I("v_cndmask_b32 v25, v25, v7, vcc")
    a.I(f"s_lshl_b32 s{sT}, s{sJ}, 3")
    a.I(f"s_add_u32 s{sT}, s{sT}, s3")
    a.I(f"s_mul_i32 s{sU}, s{sT}, 1792")
    a.I(f"v_add_u32 v5, s{sU}, v25")
    a.I(f"s_mul_i32 s{sU}, s{sT}, 3584")
    a.I(f"v_add_u32 v4, s{sU}, v25")
    a.I("v_lshrrev_b32 v6, 5, v1")
    a.I(f"s_mov_b32 s{sSELL}, 0x05040100")
    a.I(f"s_mov_b32 s{sSELH}, 0x07060302")
    a.I(f"s_mov_b32 s{sM3}, 0xcccccccc"); a.I(f"s_mov_b32 s{sM3+1}, 0xcccccccc")
    a.I(f"s_mov_b32 s{sM4}, 0xaaaaaaaa"); a.I(f"s_mov_b32 s{sM4+1}, 0xaaaaaaaa")
    a.I("s_cmp_ge_u32 s2, 28")
    a.I(f"s_cselect_b32 s{sBT}, 1, 0")
    a.I(f"s_mul_i32 s{sT}, s{sBT}, 28")
    a.I(f"s_sub_u32 s{sTASK}, s2, s{sT}")
    a.I(f"s_mul_i32 s{sT}, s{sBT}, 896")
    gx, gg = alloc("GX"), alloc("GG")
    a.I(f"buffer_load_dwordx4 v[{gx}:{gx+3}], v25, s[60:63], s{sT} offen", "GX")
    a.I(f"buffer_load_dwordx4 v[{gg}:{gg+3}], v25, s[64:67], 0 offen", "GG")
    a.I(f"s_lshl_b32 s{sU}, s{sTASK}, 5")
    a.I("v_and_b32 v21, 15, v1")
    a.I("v_lshlrev_b32 v21, 1, v21")
    a.I(f"buffer_load_ushort v33, v21, s[68:71], s{sU} offen", "B2")
    a.I("v_and_b32 v11, 7, v1")
    a.I("v_lshlrev_b32 v11, 3, v11")
    a.I("v_lshrrev_b32 v12, 4, v1")
    a.I("v_bfe_u32 v13, v1, 3, 1")
    a.I("v_lshl_add_u32 v12, v13, 2, v12")
    a.I("v_add_u32 v11, v11, v12")
    a.I(f"s_lshl_b32 s{sT}, s3, 8")
    a.I(f"v_lshl_add_u32 v34, v11, 2, s{sT}")
    a.I(f"s_lshl_b32 s{sT}, s3, 2")
    a.I(f"v_mov_b32 v31, s{sT}")
    a.I(f"s_lshl_b32 s{sT}, s{sH}, 13")
    a.I(f"s_lshl_b32 s{sU}, s{sCG}, 9")
    a.I(f"s_add_u32 s{sT}, s{sT}, s{sU}")
    a.I(f"s_lshl_b32 s{sU}, s{sRG}, 11")
    a.I(f"s_add_u32 s{sT}, s{sT}, s{sU}")
    a.I(f"s_add_u32 s{sCG}, s{sT}, {WS_Q}")
    a.I(f"s_lshl_b32 s{sT}, s{sCG1}, 9")
    a.I(f"s_mul_i32 s{sU}, s{sRG1}, 14336")
    a.I(f"s_add_u32 s{sT}, s{sT}, s{sU}")
    a.I(f"s_add_u32 s{sT}, s{sT}, {WS_H}")
    a.I("s_cmp_ge_u32 s2, 224")
    a.I(f"s_cselect_b32 s{sT}, {OOB}, s{sT}")
    a.I("s_cmp_eq_u32 s3, 0")
    a.I(f"s_cselect_b32 s{sCG}, s{sCG}, s{sT}")
    a.I(f"s_mov_b32 s{sT}, 114688")
    a.I(f"s_cselect_b32 s{sT}, 0x20000, s{sT}")
    a.I("v_and_b32 v30, 31, v1")
    a.I(f"v_lshlrev_b32 v30, 4, v30")
    a.I(f"v_mul_lo_u32 v11, v6, s{sT}")
    a.I(f"v_add3_u32 v30, v30, v11, s{sCG}")
    while nxt[0] < o.s_proj: slot()
    a.wait_vm("EP")
    a.I(f"v_readfirstlane_b32 s{sT}, v32")
    a.I(f"s_mul_i32 s{sTAG}, s{sT}, 0x9E3779B1")
    a.I(f"s_add_u32 s{sTAG}, s{sTAG}, 0x7F4A7C15")
    a.I(f"v_mov_b32 v32, s{sTAG}")
    for k in range(6): a.I(f"v_lshlrev_b32 v{42+k}, 16, v{36+k}")
    def proj(srcs, st):
        for n, (tag, x) in enumerate(srcs):
            r = buf[tag]
            for e in range(4):
                a.I(f"v_dot2_f32_bf16 v{8+2*e}, v{r+e}, v{x}, {'0' if n == 0 else f'v{8+2*e}'}")
                a.I(f"v_dot2_f32_bf16 v{9+2*e}, v{r+e}, v{x+6}, {'0' if n == 0 else f'v{9+2*e}'}")
        for e in range(4): a.I(f"v_permlane16_swap_b32 v{8+2*e}, v{9+2*e}")
        for e in range(4): a.I(f"v_add_f32 v{8+2*e}, v{8+2*e}, v{9+2*e}")
        a.I("v_permlane32_swap_b32 v8, v10"); a.I("v_permlane32_swap_b32 v12, v14")
        a.I("v_add_f32 v8, v8, v10"); a.I("v_add_f32 v12, v12, v14")
        t = 16 + st
        a.I(dpp("v_add_f32", t, 8, 8, "row_ror:8", bm="0x3"))
        a.I(dpp("v_add_f32", t, 12, 12, "row_ror:8", bm="0xc"))
        a.I(f"ds_write_b32 v34, v{t} offset:{RP + st*2048}")
    proj([(("WQ", 0), 36), (("WQ", 1), 37)], 0)
    proj([(("WQ", 0), 38), (("WQ", 1), 39)], 1)
    slot()
    proj([(("W1", 0), 40)], 2)
    proj([(("W1", 0), 41)], 3)
    for t in (("WQ", 0), ("WQ", 1), ("W1", 0)): free(t)
    slot()
    a.I("v_lshrrev_b32 v20, 5, v0")
    a.I("v_and_b32 v21, 31, v0")
    a.I("v_lshlrev_b32 v21, 3, v21")
    a.I("v_lshl_add_u32 v21, v20, 11, v21")
    a.wait_lg()
    a.I("s_barrier")
    def sum8_b64(addr, base, pitch):
        for w in range(8): a.I(f"ds_read_b64 v[{36+2*w}:{37+2*w}], v{addr} offset:{base + w*pitch}", ("s8", w))
        for lv in (1, 2, 4):
            for w in range(0, 8, 2*lv):
                if lv == 1: a.wait_lg(("s8", w + 1))
                for k in range(2): a.I(f"v_add_f32 v{36+2*w+k}, v{36+2*w+k}, v{36+2*(w+lv)+k}")
    a.I("s_cmp_ge_u32 s3, 2")
    a.I("s_cbranch_scc1 L_pjdone")
    sum8_b64(21, RP, 256)
    a.I("v_mov_b32 v38, v37"); a.I("v_mov_b32 v37, v32"); a.I("v_mov_b32 v39, v32")
    a.I("buffer_store_dwordx4 v[36:39], v30, s[56:59], 0 offen sc1"); a.vm.pop()
    a.label("L_pjdone")
    slot()
    a.wait_vm("B2")
    for e in range(4):
        a.I(f"v_lshlrev_b32 v20, 16, v{gx+e}"); a.I(f"v_and_b32 v21, 0xffff0000, v{gx+e}")
        a.I(f"v_lshlrev_b32 v22, 16, v{gg+e}"); a.I(f"v_and_b32 v23, 0xffff0000, v{gg+e}")
        a.I("v_mul_f32 v20, v20, v22"); a.I("v_mul_f32 v21, v21, v23")
        a.I(f"v_cvt_pk_bf16_f32 v{8+e}, v20, v21")
    for e in range(4):
        a.I(f"v_lshlrev_b32 v20, 16, v{8+e}"); a.I(f"v_and_b32 v21, 0xffff0000, v{8+e}")
        a.I(f"v_add_f32 v{8+e}, v20, v21")
    a.I("v_add_f32 v8, v8, v9"); a.I("v_add_f32 v10, v10, v11"); a.I("v_add_f32 v8, v8, v10")
    free("GX"); free("GG")
    slot()
    wave_reduce63(a, "v_add_f32", 8)
    a.I("v_cvt_pk_bf16_f32 v8, v8, v8")
    a.I("v_and_b32 v8, 0xffff0000, v8")
    a.I(f"v_mul_f32 v8, {hex(f2u(-1.4426950408889634))}, v8")
    a.I("v_exp_f32 v8, v8")
    a.I("v_add_f32 v8, 1.0, v8")
    a.I("v_rcp_f32 v8, v8")
    a.I("v_cvt_pk_bf16_f32 v8, v8, v8")
    a.I("v_and_b32 v8, 0xffff0000, v8")
    a.I("v_sub_f32 v9, 1.0, v8")
    a.I("v_cvt_pk_bf16_f32 v9, v9, v9")
    a.I("v_and_b32 v9, 0xffff0000, v9")
    a.I(f"v_readlane_b32 s{sG}, v8, 63")
    a.I(f"v_readlane_b32 s{sOMG}, v9, 63")
    a.I("s_cmp_lt_u32 s2, 56")
    a.I(f"s_cselect_b32 s{sRED}, 1, 0")
    stamp()
    def poll_check(name, regs, mask, reissue, sleep=2):
        a.I(f"s_mov_b32 s{sCNT}, {SPIN}")
        a.label(f"L_{name}chk")
        a.I(f"v_cmp_ne_u32 vcc, v{regs[0]}, v32")
        for r in regs[1:]:
            a.I(f"v_cmp_ne_u32 s[98:99], v{r}, v32")
            a.I("s_or_b64 vcc, vcc, s[98:99]")
        if mask != -1:
            a.I(f"s_and_b64 vcc, vcc, {mask}")
        else:
            a.I("s_cmp_lg_u64 vcc, 0")
        a.I(f"s_cbranch_scc0 L_{name}ok")
        a.I(f"s_sub_u32 s{sCNT}, s{sCNT}, 1")
        a.I(f"s_cbranch_scc1 L_{name}ok")
        if sleep: a.I(f"s_sleep {sleep}")
        n0 = len(a.vm)
        reissue()
        a.vm = a.vm[:n0]
        a.I("s_waitcnt vmcnt(0)")
        a.I(f"s_branch L_{name}chk")
        a.label(f"L_{name}ok")
    while nxt[0] < o.s_poll: slot()
    a.I(f"s_lshl_b32 s{sW}, s{sBH}, 13")
    a.I(f"s_add_u32 s{sW}, s{sW}, {WS_Q}")
    a.I("v_and_b32 v22, 3, v0")
    a.I("v_lshlrev_b32 v22, 11, v22")
    a.I("v_and_b32 v21, 0x1fc, v0")
    a.I("v_lshl_add_u32 v22, v21, 2, v22")
    qp = lambda tag=None: a.I(f"buffer_load_dwordx4 v[8:11], v22, s[56:59], s{sW} offen sc1", tag)
    qp("QP")
    a.I(f"s_mul_i32 s{sT}, s{sB}, 7168")
    a.I(f"s_lshl_b32 s{sU}, s{sJ}, 3")
    a.I(f"s_add_u32 s{sT}, s{sT}, s{sU}")
    a.I(f"s_add_u32 s{sT}, s{sT}, s3")
    a.I(f"s_lshl_b32 s{sT}, s{sT}, 4")
    a.I(f"s_add_u32 s{sT}, s{sT}, {WS_H}")
    a.I(f"s_cmp_ge_u32 s{sJ}, 112")
    a.I(f"s_cselect_b32 s{sT}, {OOB}, s{sT}")
    a.I("v_cmp_gt_u32 vcc, 8, v1")
    a.I(f"v_mov_b32 v20, {OOB}")
    a.I("v_mul_u32_u24 v21, 0x3800, v1")
    a.I(f"v_add_u32 v21, s{sT}, v21")
    a.I("v_cndmask_b32 v20, v20, v21, vcc")
    hp = lambda tag=None: a.I("buffer_load_dwordx4 v[12:15], v20, s[56:59], 0 offen sc1", tag)
    hp("HP")
    for _ in range(D): slot()
    a.wait_vm("HP")
    poll_check("q", [9, 11], -1, qp)
    for c in ("quad_perm:[1,0,3,2]", "quad_perm:[2,3,0,1]"):
        a.I(dpp("v_add_f32", 8, 8, 8, c)); a.I(dpp("v_add_f32", 10, 10, 10, c))
    a.I("v_cvt_pk_bf16_f32 v8, v8, v10")
    a.I("v_and_b32 v21, 0x1fc, v0")
    a.I(f"ds_write_b32 v21, v8 offset:{QS}")
    a.I(f"s_cmp_ge_u32 s{sJ}, 112")
    a.I("s_cbranch_scc1 L_hok")
    poll_check("h", [13, 15], "0xff", hp)
    slot()
    a.wait_lg()
    a.I("s_barrier")
    stamp()
    a.I("v_and_b32 v24, 31, v1")
    a.I("v_lshlrev_b32 v24, 4, v24")
    a.I(f"ds_read_b128 v[16:19], v24 offset:{QS}", "q")
    a.I("v_lshlrev_b32 v28, 1, v24")
    a.I("v_lshl_add_u32 v28, v6, 4, v28")
    a.I(f"s_lshl_b32 s{sT}, s3, 10")
    a.I(f"v_add_u32 v28, s{sT}, v28")
    a.I(f"s_lshl_b32 s{sT}, s3, 11")
    a.I(f"v_lshl_add_u32 v29, v1, 5, s{sT}")
    for c in ("quad_perm:[1,0,3,2]", "quad_perm:[2,3,0,1]", "row_half_mirror"):
        a.I(dpp("v_add_f32", 12, 12, 12, c)); a.I(dpp("v_add_f32", 14, 14, 14, c))
    a.I("v_cvt_pk_bf16_f32 v20, v12, v14")
    a.I(f"s_lshl_b32 s{sT}, s{sB1}, 16")
    a.I(f"s_and_b32 s{sU}, s{sB1}, 0xffff0000")
    a.I("v_lshlrev_b32 v21, 16, v20"); a.I("v_and_b32 v22, 0xffff0000, v20")
    a.I(f"v_add_f32 v21, s{sT}, v21"); a.I(f"v_add_f32 v22, s{sU}, v22")
    a.I("v_cvt_pk_bf16_f32 v20, v21, v22")
    a.I("v_lshlrev_b32 v21, 16, v20"); a.I("v_and_b32 v22, 0xffff0000, v20")
    a.I("v_max_f32 v21, 0, v21"); a.I("v_max_f32 v22, 0, v22")
    a.I("v_mul_f32 v21, v21, v21"); a.I("v_mul_f32 v22, v22, v22")
    a.I("v_cvt_pk_bf16_f32 v20, v21, v22")
    a.I(f"v_readfirstlane_b32 s{sB1}, v20")
    slot()
    assert landed(("W2", 1)), "w2 must have landed: lower s_w2"
    A = [buf[("W2", 0)] + e for e in range(4)]; B = [buf[("W2", 1)] + e for e in range(4)]
    for e in range(4):
        a.I(f"v_perm_b32 v20, v{B[e]}, v{A[e]}, s{sSELL}")
        a.I(f"v_perm_b32 v21, v{B[e]}, v{A[e]}, s{sSELH}")
        a.I(f"v_dot2_f32_bf16 v{8+2*e}, v20, s{sB1}, 0")
        a.I(f"v_dot2_f32_bf16 v{9+2*e}, v21, s{sB1}, 0")
    free(("W2", 0)); free(("W2", 1))
    a.I(f"ds_write_b128 v29, v[8:11] offset:{OP}")
    a.I(f"ds_write_b128 v29, v[12:15] offset:{OP+16}")
    slot()
    a.wait_lg()
    lvl = {}
    tfree = [20, 21, 22, 23, 26, 27, 8, 9, 10, 11, 12, 13]
    def merge(level, A, B):
        if level == 0:
            a.I(f"v_permlane16_swap_b32 v{A}, v{B}")
            a.I(f"v_add_f32 v{A}, v{A}, v{B}")
            tfree.append(B); return A
        if level in (1, 2):
            R = tfree.pop(0)
            if level == 1:
                a.I(dpp("v_add_f32", R, A, A, "row_ror:8", bm="0x3"))
                a.I(dpp("v_add_f32", R, B, B, "row_ror:8", bm="0xc"))
            else:
                a.I(dpp("v_add_f32", R, A, A, "row_shl:4", bm="0x5"))
                a.I(dpp("v_add_f32", R, B, B, "row_shr:4", bm="0xa"))
            tfree.extend([A, B]); return R
        q = "quad_perm:[2,3,0,1]" if level == 3 else "quad_perm:[1,0,3,2]"
        m = f"s[{sM3}:{sM3+1}]" if level == 3 else f"s[{sM4}:{sM4+1}]"
        a.I(dpp("v_add_f32", A, A, A, q))
        a.I(dpp("v_add_f32", B, B, B, q))
        a.I(f"v_cndmask_b32 v{A}, v{A}, v{B}, {m}")
        tfree.append(B); return A
    def kcons(i):
        a.wait_vm(("K", i))
        r = buf[("K", i)]
        t = tfree.pop(0)
        a.I(f"v_dot2_f32_bf16 v{t}, v{r}, v16, 0")
        for e in range(1, 4): a.I(f"v_dot2_f32_bf16 v{t}, v{r+e}, v{16+e}, v{t}")
        free(("K", i))
        L = 0
        while L in lvl:
            t = merge(L, lvl.pop(L), t); L += 1
        lvl[L] = t
    kd = 0
    while kd < 32:
        c = 0
        while kd < 32 and c < o.kps and landed(("K", kd)):
            kcons(kd); kd += 1; c += 1
        if kd < 32: slot()
    vS = lvl[5]
    a.I(f"v_cvt_pk_bf16_f32 v{vS}, v{vS}, v{vS}")
    a.I(f"v_and_b32 v30, 0xffff0000, v{vS}")
    a.I("v_mov_b32 v20, v30")
    wave_reduce63(a, "v_max_f32", 20)
    a.I(f"v_readlane_b32 s{sT}, v20, 63")
    a.I(f"v_mov_b32 v20, s{sT}")
    a.I(f"ds_write_b32 v31, v20 offset:{MX}")
    slot()
    a.wait_lg()
    stamp()
    a.I("s_barrier")
    a.I("v_mov_b32 v21, 0")
    a.I(f"ds_read_b128 v[8:11], v21 offset:{MX}")
    a.I(f"ds_read_b128 v[12:15], v21 offset:{MX+16}")
    a.I("v_bfrev_b32 v22, v1")
    a.I("v_bfe_u32 v22, v22, 27, 5")
    a.I("v_lshlrev_b32 v22, 2, v22")
    a.I(f"s_lshl_b32 s{sT}, s3, 8")
    a.I(f"v_lshl_add_u32 v23, v6, 7, s{sT}")
    a.I("v_add_u32 v22, v22, v23")
    a.wait_lg()
    a.I("v_max3_f32 v8, v8, v9, v10"); a.I("v_max3_f32 v12, v12, v13, v14"); a.I("v_max3_f32 v8, v8, v11, v15")
    a.I("v_max_f32 v34, v8, v12")
    a.I("v_sub_f32 v20, v30, v34")
    a.I(f"v_mul_f32 v20, {hex(f2u(C_SCALE))}, v20")
    a.I("v_exp_f32 v20, v20")
    a.I(f"ds_write_b32 v22, v20 offset:{PS}")
    a.I("v_mov_b32 v21, v20")
    wave_reduce63(a, "v_add_f32", 21)
    a.I(f"v_readlane_b32 s{sT}, v21, 63")
    a.I(f"v_mov_b32 v21, s{sT}")
    a.I(f"ds_write_b32 v31, v21 offset:{LW}")
    slot()
    a.I("v_lshlrev_b32 v59, 3, v0")
    a.I("v_lshlrev_b32 v58, 4, v0")
    a.I("v_cmp_gt_u32 vcc, 0xe0, v0")
    a.I(f"v_mov_b32 v22, {OOB}")
    a.I(f"s_mul_i32 s{sT}, s{sROW}, 3584")
    a.I(f"v_add_u32 v58, s{sT}, v58")
    a.I("v_cndmask_b32 v58, v22, v58, vcc")
    a.I("s_cmp_ge_u32 s3, 4")
    a.I("s_cbranch_scc1 L_mpub")
    sum8_b64(59, OP, 2048)
    a.I("v_mov_b32 v38, v37"); a.I("v_mov_b32 v37, v32"); a.I("v_mov_b32 v39, v32")
    a.I(f"s_mov_b32 s{sT}, {WS_M}")
    a.I(f"buffer_store_dwordx4 v[36:39], v58, s[56:59], s{sT} offen sc1"); a.vm.pop()
    a.label("L_mpub")
    slot()
    a.wait_lg()
    a.I("s_barrier")
    a.I("v_mov_b32 v21, 0")
    a.I(f"ds_read_b128 v[40:43], v21 offset:{LW}", "l0")
    a.I(f"ds_read_b128 v[44:47], v21 offset:{LW+16}", "l1")
    PB = [16, 24]
    a.I(f"ds_read_b128 v[16:19], v23 offset:{PS}", ("p", 0))
    a.I("v_cmp_eq_u32 vcc, 0x140, v0")
    a.I(f"v_mov_b32 v22, {OOB}")
    a.I("v_cndmask_b32 v22, v22, v21, vcc")
    a.I(f"s_lshl_b32 s{sT}, s{sROW}, 7")
    a.I(f"s_add_u32 s{sT}, s{sT}, {WS_ML}")
    a.wait_lg("l1")
    a.I("v_add_f32 v40, v40, v41"); a.I("v_add_f32 v42, v42, v43"); a.I("v_add_f32 v44, v44, v45"); a.I("v_add_f32 v46, v46, v47")
    a.I("v_add_f32 v40, v40, v42"); a.I("v_add_f32 v44, v44, v46"); a.I("v_add_f32 v42, v40, v44")
    a.I("v_mov_b32 v40, v34"); a.I("v_mov_b32 v41, v32"); a.I("v_mov_b32 v43, v32")
    a.I(f"buffer_store_dwordx4 v[40:43], v22, s[56:59], s{sT} offen sc1", "MLST")
    def vcons(i):
        if i % 4 == 0:
            c = i // 4
            if c + 1 < 8:
                nb = PB[(c + 1) & 1]
                a.I(f"ds_read_b128 v[{nb}:{nb+3}], v23 offset:{PS + (c+1)*16}", ("p", c + 1))
            a.wait_lg(("p", c))
        a.wait_vm(("V", i))
        r = buf[("V", i)]
        p = PB[(i // 4) & 1] + (i % 4)
        for e in range(4):
            a.I(f"v_lshlrev_b32 v20, 16, v{r+e}")
            a.I(f"v_and_b32 v21, 0xffff0000, v{r+e}")
            op = "v_mul_f32" if i == 0 else "v_fmac_f32"
            a.I(f"{op} v{8+2*e}, v20, v{p}")
            a.I(f"{op} v{9+2*e}, v21, v{p}")
        free(("V", i))
    vd = 0
    mlstate = 0
    def ml_issue(tag=None):
        a.I(f"buffer_load_dwordx4 v[36:39], v22, s[56:59], s{sW} offen sc1", tag)
    def m_issue(tag=None):
        a.I(f"buffer_load_dwordx4 v[40:43], v62, s[56:59], s{sB1} offen sc1")
        a.I(f"buffer_load_dwordx4 v[44:47], v63, s[56:59], s{sB1} offen sc1", tag)
    def red_part(A, B, base):
        a.I(f"v_add_f32 v{A}, v{A}, v{B}"); a.I(f"v_add_f32 v{A+2}, v{A+2}, v{B+2}")
        a.I(f"v_permlane16_swap_b32 v{A}, v{A+2}")
        a.I(f"v_add_f32 v{A}, v{A}, v{A+2}")
        a.I(dpp("v_add_f32", A, A, A, "row_ror:8"))
        a.I(f"v_mov_b32 v{A+1}, v{A}")
        a.I(f"v_permlane32_swap_b32 v{A}, v{A+1}")
        a.I(f"v_add_f32 v{A}, v{A}, v{A+1}")
        a.I(f"ds_write_b32 v55, v{A} offset:{base}")
    def red_final(base, R):
        a.I(f"ds_read_b32 v{R}, v54 offset:{base}")
        a.I(f"ds_read_b32 v{R+1}, v54 offset:{base+64}")
        a.wait_lg()
        a.I(f"v_add_f32 v{R}, v{R}, v{R+1}")
        a.I(f"v_mov_b32 v{R+1}, v{R}")
        a.I(f"v_permlane16_swap_b32 v{R}, v{R+1}")
        a.I(f"v_add_f32 v{R}, v{R}, v{R+1}")
        a.I(f"v_mov_b32 v{R+1}, v{R}")
        a.I(f"v_permlane32_swap_b32 v{R}, v{R+1}")
        a.I(f"v_add_f32 v{R}, v{R}, v{R+1}")
    wp = {}
    while vd < 32:
        c = 0
        while vd < 32 and c < o.vps and (landed(("V", vd)) or nxt[0] >= len(stream)):
            vcons(vd); vd += 1; c += 1
        if mlstate == 0 and nxt[0] >= o.s_ml:
            a.I("v_and_b32 v22, 0x1b8, v0")
            a.I("v_cmp_eq_u32 vcc, 0, v22")
            a.I(f"v_mov_b32 v22, {OOB}")
            a.I("v_lshlrev_b32 v30, 7, v1")
            a.I("v_cndmask_b32 v22, v22, v30, vcc")
            a.I(f"s_lshl_b32 s{sW}, s{sBH}, 10")
            a.I(f"s_add_u32 s{sW}, s{sW}, {WS_ML}")
            ml_issue("MLP")
            a.I(f"s_lshl_b32 s{sT}, s{sBT}, 3")
            a.I(f"s_add_u32 s{sT}, s{sT}, s3")
            a.I(f"s_mul_i32 s{sT}, s{sT}, {16*3584}")
            a.I(f"s_lshl_b32 s{sU}, s{sTASK}, 7")
            a.I(f"s_add_u32 s{sT}, s{sT}, s{sU}")
            a.I(f"s_cmp_eq_u32 s{sRED}, 0")
            a.I(f"s_cselect_b32 s{sT}, {OOB}, s{sT}")
            a.I("v_lshrrev_b32 v62, 3, v1")
            a.I("v_mul_u32_u24 v62, 0xe00, v62")
            a.I("v_and_b32 v63, 7, v1")
            a.I("v_lshl_add_u32 v62, v63, 4, v62")
            a.I(f"v_add_u32 v62, s{sT}, v62")
            a.I("v_bfe_u32 v55, v1, 4, 1")
            a.I("v_lshl_add_u32 v55, v63, 1, v55")
            a.I(f"s_lshl_b32 s{sT}, s3, 6")
            a.I(f"v_lshl_add_u32 v55, v55, 2, s{sT}")
            a.I(f"v_add_u32 v63, {8*3584}, v62")
            a.I(f"s_mov_b32 s{sB1}, {WS_M}")
            m_issue("MP")
            mlstate = 1
        elif mlstate == 1 and "MP" not in a.vm:
            a.I("s_cmp_ge_u32 s3, 2")
            a.I("s_cbranch_scc1 L_mldone")
            poll_check("ml", [37, 39], "0xff", ml_issue)
            a.I("v_mov_b32 v37, v36")
            for cc in ("quad_perm:[1,0,3,2]", "quad_perm:[2,3,0,1]", "row_half_mirror"):
                a.I(dpp("v_max_f32", 37, 37, 37, cc))
            a.I("v_sub_f32 v36, v36, v37")
            a.I("v_sub_f32 v39, v34, v37")
            a.I(f"v_mul_f32 v36, {hex(f2u(C_SCALE))}, v36")
            a.I(f"v_mul_f32 v39, {hex(f2u(C_SCALE))}, v39")
            a.I("v_exp_f32 v36, v36")
            a.I("v_exp_f32 v39, v39")
            a.I("v_mul_f32 v38, v38, v36")
            for cc in ("quad_perm:[1,0,3,2]", "quad_perm:[2,3,0,1]", "row_half_mirror"):
                a.I(dpp("v_add_f32", 38, 38, 38, cc))
            a.I("v_rcp_f32 v38, v38")
            a.I("v_mul_f32 v38, v38, v39")
            a.I(f"v_readfirstlane_b32 s{sW}, v38")
            a.label("L_mldone")
            a.I(f"s_cmp_eq_u32 s{sRED}, 0")
            a.I("s_cbranch_scc1 L_mdone")
            poll_check("m", [41, 43, 45, 47], -1, m_issue)
            red_part(40, 44, RM); a.lg.pop()
            a.label("L_mdone")
            mlstate = 2
            a.I("v_and_b32 v57, 0x31, v1")
            a.I("v_cmp_eq_u32 vcc, 0, v57")
            a.I(f"v_mov_b32 v57, {OOB}")
            a.I("v_lshlrev_b32 v22, 1, v1")
            a.I("v_cndmask_b32 v57, v57, v22, vcc")
            a.I("v_and_b32 v54, 15, v1")
            a.I("v_lshrrev_b32 v22, 4, v1")
            a.I("v_lshlrev_b32 v54, 2, v54")
            a.I("v_lshl_add_u32 v54, v22, 7, v54")
            a.I(f"s_lshl_b32 s{sT}, s{sROW}, 11")
            a.I(f"v_lshl_add_u32 v60, v0, 4, s{sT}")
            a.I("v_cmp_gt_u32 vcc, 16, v1")
            a.I(f"s_lshl_b32 s{sU}, s{sBH}, 14")
            a.I(f"s_lshl_b32 s{sT}, s{sS}, 8")
            a.I(f"s_add_u32 s{sU}, s{sU}, s{sT}")
            a.I(f"s_lshl_b32 s{sT}, s3, 5")
            a.I(f"s_add_u32 s{sU}, s{sU}, s{sT}")
            a.I("v_lshrrev_b32 v61, 1, v1")
            a.I("v_and_b32 v22, 1, v1")
            a.I("v_lshlrev_b32 v22, 4, v22")
            a.I("v_lshl_add_u32 v61, v61, 11, v22")
            a.I(f"v_add_u32 v61, s{sU}, v61")
            a.I(f"v_mov_b32 v22, {OOB}")
            a.I("v_cndmask_b32 v61, v22, v61, vcc")
        elif mlstate == 2 and not wp and landed(("WO", 3)):
            spare = [30]
            for j in range(2):
                A = [buf[("WO", 2*j)] + e for e in range(4)]; B = [buf[("WO", 2*j+1)] + e for e in range(4)]
                out = []
                for e in range(4):
                    t = spare.pop(0)
                    a.I(f"v_perm_b32 v{t}, v{B[e]}, v{A[e]}, s{sSELL}")
                    a.I(f"v_perm_b32 v{B[e]}, v{B[e]}, v{A[e]}, s{sSELH}")
                    spare.append(A[e]); out += [t, B[e]]
                wp[j] = out
        slot()
    assert mlstate == 2
    while slot(): pass
    stamp()
    for k in range(4): a.I(f"v_permlane32_swap_b32 v{8+k}, v{12+k}")
    for k in range(4): a.I(f"v_add_f32 v{8+k}, v{8+k}, v{12+k}")
    a.I(f"ds_write_b128 v28, v[8:11] offset:{OA}")
    a.I(f"s_mov_b32 s{sT}, {WS_O}")
    a.I(f"s_mov_b32 s{sU}, {WS_O2}")
    a.wait_lg()
    a.I("s_barrier")
    a.I("s_cmp_ge_u32 s3, 2")
    a.I("s_cbranch_scc1 L_odone")
    sum8_b64(59, OA, 1024)
    a.I(f"v_mul_f32 v38, s{sW}, v37")
    a.I(f"v_mul_f32 v36, s{sW}, v36")
    a.I("v_mov_b32 v37, v32"); a.I("v_mov_b32 v39, v32")
    if o.dual:
        a.I(f"buffer_store_dwordx4 v[36:39], v60, s[56:59], s{sU} offen"); a.vm.pop()
    a.I(f"buffer_store_dwordx4 v[36:39], v60, s[56:59], s{sT} offen sc1"); a.vm.pop()
    a.label("L_odone")
    stamp()
    a.I("s_cmp_lg_u32 s3, 7")
    a.I("s_cbranch_scc1 L_bmdone")
    red_final(RM, 40)
    a.I("v_cvt_pk_bf16_f32 v40, v40, v40")
    a.I("v_lshlrev_b32 v41, 16, v33")
    a.I("v_and_b32 v40, 0xffff0000, v40")
    a.I("v_add_f32 v40, v40, v41")
    a.I("v_cvt_pk_bf16_f32 v40, v40, v40")
    a.I("v_and_b32 v40, 0xffff0000, v40")
    a.I(f"v_mul_f32 v40, s{sOMG}, v40")
    a.I("v_cvt_pk_bf16_f32 v40, v40, v40")
    a.I("v_and_b32 v56, 0xffff0000, v40")
    a.label("L_bmdone")
    if not wp:
        a.wait_vm(("WO", 3))
        spare = [30]
        for j in range(2):
            A = [buf[("WO", 2*j)] + e for e in range(4)]; B = [buf[("WO", 2*j+1)] + e for e in range(4)]
            out = []
            for e in range(4):
                t = spare.pop(0)
                a.I(f"v_perm_b32 v{t}, v{B[e]}, v{A[e]}, s{sSELL}")
                a.I(f"v_perm_b32 v{B[e]}, v{B[e]}, v{A[e]}, s{sSELH}")
                spare.append(A[e]); out += [t, B[e]]
            wp[j] = out
    a.I(f"s_mov_b32 s{sCNT}, {SPIN}")
    a.label("L_opoll")
    if o.dual:
        a.I(f"buffer_load_dwordx4 v[16:19], v61, s[56:59], s{sU} offen sc1")
        a.I("s_waitcnt vmcnt(0)")
        a.I("v_cmp_ne_u32 vcc, v17, v32")
        a.I("v_cmp_ne_u32 s[98:99], v19, v32")
        a.I("s_or_b64 vcc, vcc, s[98:99]")
        a.I("s_and_b32 s98, vcc_lo, 0xffff")
        a.I("s_cbranch_scc0 L_ook")
        a.I(f"s_sub_u32 s{sCNT}, s{sCNT}, 1")
        a.I("s_cbranch_scc1 L_ook")
        a.I(f"s_and_b32 s98, s{sCNT}, {o.dual - 1}")
        a.I("s_cbranch_scc1 L_opoll")
        a.I(f"buffer_load_dwordx4 v[24:27], v61, s[56:59], s{sT} offen sc1")
        a.I("s_waitcnt vmcnt(0)")
        for k in range(4): a.I(f"v_cndmask_b32 v{16+k}, v{16+k}, v{24+k}, vcc")
    else:
        a.I(f"buffer_load_dwordx4 v[16:19], v61, s[56:59], s{sT} offen sc1")
        a.I("s_waitcnt vmcnt(0)")
    a.I("v_cmp_ne_u32 vcc, v17, v32")
    a.I("v_cmp_ne_u32 s[98:99], v19, v32")
    a.I("s_or_b64 vcc, vcc, s[98:99]")
    a.I("s_and_b32 s98, vcc_lo, 0xffff")
    a.I("s_cbranch_scc0 L_ook")
    if o.osleep: a.I(f"s_sleep {o.osleep}")
    a.I(f"s_sub_u32 s{sCNT}, s{sCNT}, 1")
    a.I("s_cbranch_scc0 L_opoll")
    a.label("L_ook")
    a.vm = []
    stamp()
    a.I(dpp("v_add_f32", 16, 16, 16, "quad_perm:[2,3,0,1]"))
    a.I(dpp("v_add_f32", 18, 18, 18, "quad_perm:[2,3,0,1]"))
    a.I(dpp("v_add_f32", 16, 16, 16, "row_ror:4"))
    a.I(dpp("v_add_f32", 18, 18, 18, "row_ror:4"))
    a.I(dpp("v_add_f32", 16, 16, 16, "row_ror:8"))
    a.I(dpp("v_add_f32", 18, 18, 18, "row_ror:8"))
    a.I("v_cvt_pk_bf16_f32 v16, v16, v18")
    a.I(f"v_readlane_b32 s{sT}, v16, 0")
    a.I(f"v_readlane_b32 s{sU}, v16, 1")
    for c in range(8): a.I(f"v_dot2_f32_bf16 v{8+c}, v{wp[0][c]}, s{sT}, 0")
    for c in range(8): a.I(f"v_dot2_f32_bf16 v{8+c}, v{wp[1][c]}, s{sU}, v{8+c}")
    a.I(f"ds_write_b128 v29, v[8:11] offset:{OP}")
    a.I(f"ds_write_b128 v29, v[12:15] offset:{OP+16}")
    a.I(f"s_mov_b32 s{sT}, {WS_P}")
    a.wait_lg()
    a.I("s_barrier")
    a.I("s_cmp_ge_u32 s3, 4")
    a.I("s_cbranch_scc1 L_ppub")
    sum8_b64(59, OP, 2048)
    a.I("v_mov_b32 v38, v37"); a.I("v_mov_b32 v37, v32"); a.I("v_mov_b32 v39, v32")
    a.I(f"buffer_store_dwordx4 v[36:39], v58, s[56:59], s{sT} offen sc1"); a.vm.pop()
    a.label("L_ppub")
    stamp()
    a.I(f"s_cmp_eq_u32 s{sRED}, 0")
    a.I("s_cbranch_scc1 L_fin")
    a.I(f"s_mov_b32 s{sCNT}, {SPIN}")
    a.I("s_mov_b64 s[4:5], -1")
    a.I("s_mov_b64 s[6:7], -1")
    a.label("L_rpoll")
    a.I("s_mov_b64 exec, s[4:5]")
    a.I("s_cbranch_execz L_rp1")
    a.I(f"buffer_load_dwordx4 v[8:11], v62, s[56:59], s{sT} offen sc1")
    a.label("L_rp1")
    a.I("s_mov_b64 exec, s[6:7]")
    a.I("s_cbranch_execz L_rp2")
    a.I(f"buffer_load_dwordx4 v[12:15], v63, s[56:59], s{sT} offen sc1")
    a.label("L_rp2")
    a.I("s_mov_b64 exec, -1")
    a.I("s_waitcnt vmcnt(0)"); a.vm = []
    a.I("v_cmp_ne_u32 s[4:5], v9, v32")
    a.I("v_cmp_ne_u32 vcc, v11, v32")
    a.I("v_cmp_ne_u32 s[6:7], v13, v32")
    a.I("v_cmp_ne_u32 s[98:99], v15, v32")
    a.I("s_or_b64 s[4:5], s[4:5], vcc")
    a.I("s_or_b64 s[6:7], s[6:7], s[98:99]")
    a.I("s_or_b64 vcc, s[4:5], s[6:7]")
    a.I("s_cbranch_scc0 L_rok")
    a.I("s_bcnt1_i32_b64 s98, vcc")
    a.I(f"s_cmp_lt_u32 s98, {o.rthr}")
    a.I("s_cbranch_scc1 L_rshort")
    a.I(f"s_sleep {o.rsleep}")
    a.label("L_rshort")
    if o.rsleep0: a.I(f"s_sleep {o.rsleep0}")
    a.I(f"s_sub_u32 s{sCNT}, s{sCNT}, 1")
    a.I("s_cbranch_scc0 L_rpoll")
    a.label("L_rok")
    red_part(8, 12, RF)
    a.wait_lg()
    a.I("s_barrier")
    a.I("s_cmp_lg_u32 s3, 7")
    a.I("s_cbranch_scc1 L_fin")
    red_final(RF, 8)
    a.I("v_cvt_pk_bf16_f32 v8, v8, v8")
    a.I("v_and_b32 v8, 0xffff0000, v8")
    a.I(f"v_mul_f32 v8, s{sG}, v8")
    a.I("v_cvt_pk_bf16_f32 v8, v8, v8")
    a.I("v_and_b32 v8, 0xffff0000, v8")
    a.I("v_add_f32 v8, v8, v56")
    a.I("v_mov_b32_dpp v9, v8 quad_perm:[1,0,3,2] row_mask:0xf bank_mask:0xf")
    a.I("v_cvt_pk_bf16_f32 v8, v8, v9")
    a.I(f"s_lshl_b32 s{sU}, s2, 5")
    a.I(f"buffer_store_dword v8, v57, s[72:75], s{sU} offen")
    a.I("s_cmp_lg_u32 s2, 0")
    a.I("s_cbranch_scc1 L_fin")
    a.I("v_mov_b32 v9, 0")
    a.I("s_mov_b64 exec, 1")
    a.I(f"buffer_store_dword v32, v9, s[56:59], 0 offen offset:{WS_EP} sc1")
    a.I("s_mov_b64 exec, -1")
    a.label("L_fin")
    if o.ts:
        stamp()
        a.I("s_getreg_b32 s98, hwreg(HW_REG_XCC_ID)")
        a.I(f"v_writelane_b32 v{VTS}, s98, 15")
        a.I("v_cmp_gt_u32 vcc, 16, v1")
        a.I(f"v_mov_b32 v21, {OOB}")
        a.I("v_lshlrev_b32 v20, 2, v1")
        a.I("v_cndmask_b32 v20, v21, v20, vcc")
        a.I("s_lshl_b32 s98, s2, 3"); a.I("s_add_u32 s98, s98, s3"); a.I("s_lshl_b32 s98, s98, 6")
        a.I(f"s_add_u32 s98, s98, {WS_TS}")
        a.I(f"buffer_store_dword v{VTS}, v20, s[56:59], s98 offen")
    a.label("L_end")
    a.I("s_endpgm")

def main():
    ap = argparse.ArgumentParser()
    ap.add_argument("-o", default="k.s")
    ap.add_argument("--kvflags", default="nt")
    ap.add_argument("--wflags", default="")
    ap.add_argument("--pflags", default="nt")
    ap.add_argument("--depth", type=int, default=4)
    ap.add_argument("--gran", type=int, default=4096)
    ap.add_argument("--s_proj", type=int, default=8)
    ap.add_argument("--s_w2", type=int, default=14)
    ap.add_argument("--s_poll", type=int, default=18)
    ap.add_argument("--s_ml", type=int, default=56)
    ap.add_argument("--wo_early", type=int, default=0)
    ap.add_argument("--kps", type=int, default=3)
    ap.add_argument("--vps", type=int, default=2)
    ap.add_argument("--dual", type=int, default=8)
    ap.add_argument("--osleep", type=int, default=1)
    ap.add_argument("--rthr", type=int, default=16)
    ap.add_argument("--rsleep", type=int, default=12)
    ap.add_argument("--rsleep0", type=int, default=1)
    ap.add_argument("--ts", type=int, default=0)
    o = ap.parse_args()
    a = Asm()
    a.raw(HDR.rstrip("\n"))
    a.raw(f"; @launch grid=(256,1,1) block=(512,1,1) lds={LDS_BYTES}")
    a.raw('.amdgcn_target "amdgcn-amd-amdhsa--gfx950"')
    a.raw(".text")
    gen(a, o)
    a.raw('.section .rodata,"a"'); a.raw(".p2align 6")
    a.raw(f".amdhsa_kernel {KN}")
    a.raw("  .amdhsa_next_free_vgpr 256"); a.raw("  .amdhsa_next_free_sgpr 102"); a.raw("  .amdhsa_accum_offset 256")
    a.raw("  .amdhsa_group_segment_fixed_size 0"); a.raw("  .amdhsa_kernarg_size 112"); a.raw("  .amdhsa_user_sgpr_count 2")
    a.raw("  .amdhsa_user_sgpr_kernarg_segment_ptr 1"); a.raw("  .amdhsa_system_sgpr_workgroup_id_x 1")
    a.raw("  .amdhsa_float_denorm_mode_32 3")
    a.raw(".end_amdhsa_kernel")
    open(o.o, "w").write(a.text())
main()
```

```python
import sys, argparse, struct
from asmlib import Asm
KN = "gated_mix__mha_block_cached__dense_activation_squared_relu__decode_kernel"
HDR = open("gated_mix__mha_block_cached__dense_activation_squared_relu__decode.s.ref").read().split("; Override launch")[0]
def f2u(f): return struct.unpack("<I", struct.pack("<f", f))[0]
QS = 0
MX = 512
LW = 544
RF = 3072
PS = 1024
RP = 4096
OA = 4096
OP = 12288
OPW = 4352
LDS_BYTES = 12288 + 8 * OPW
WS_EP = 0
WS_ML = 0x8000
WS_Q = 0x10000
WS_H = 0x50000
WS_O = 0x90000
WS_O2 = 0x110000
WS_P = 0x190000
WS_END = 0x350000
WS_TS = 0x400000
C_SCALE = 0.0625 * 1.4426950408889634
OOB = "0x80000000"
SPIN = 1 << 20

def srd(a, d, p, nbytes):
    a.I(f"s_mov_b32 s{d}, s{p}"); a.I(f"s_mov_b32 s{d+1}, s{p+1}")
    a.I(f"s_mov_b32 s{d+2}, {nbytes}"); a.I(f"s_mov_b32 s{d+3}, 0x20000")
def dpp(op, d, s0, s1, ctrl, rm="0xf", bm="0xf"):
    return f"{op}_dpp v{d}, v{s0}, v{s1} {ctrl} row_mask:{rm} bank_mask:{bm}"
def wave_reduce63(a, op, vs):
    if isinstance(vs, int): vs = [vs]
    for c, rm in (("quad_perm:[1,0,3,2]", "0xf"), ("quad_perm:[2,3,0,1]", "0xf"), ("row_half_mirror", "0xf"), ("row_mirror", "0xf"),
                  ("row_bcast:15", "0xa"), ("row_bcast:31", "0xc")):
        for v in vs: a.I(dpp(op, v, v, v, c, rm=rm))

def gen(a, o):
    D = o.depth
    kvf, wf = o.kvflags, o.wflags
    nst = [0]
    VTS = 255
    def stamp():
        if not o.ts: return
        a.I("s_memrealtime s[98:99]")
        a.I("s_waitcnt lgkmcnt(0)"); a.smem = False; a.lg = []
        a.I(f"v_writelane_b32 v{VTS}, s98, {nst[0]}")
        nst[0] += 1
    (sH, sB, sS, sJ, sROW, sT, sU, sSO, sSELL, sSELH, sTAG, sBH, sB1, sBT, sTASK, sCNT, sG, sOMG, sW, sRED) = range(76, 96)
    sM3, sM4 = 100, 96
    vLANE, vKV, vWO, vW2, vHI, vL16 = 1, 2, 4, 5, 6, 7
    vW4, vTAG, vB2, vMS, vHH, vOAW, vOPW, vBM0, vBM1 = 31, 32, 33, 34, 35, 28, 29, 56, 57
    a.raw(f".globl {KN}"); a.raw(".p2align 8"); a.raw(f".type {KN},@function"); a.raw(f"{KN}:")
    a.I("s_cmp_ge_u32 s2, 256")
    a.I("s_cbranch_scc1 L_end")
    if o.ts: a.I("s_memrealtime s[96:97]")
    a.I("s_load_dwordx8 s[4:11], s[0:1], 0")
    a.I("s_load_dwordx8 s[12:19], s[0:1], 32")
    a.I("s_load_dwordx8 s[20:27], s[0:1], 64")
    a.I("s_load_dwordx4 s[28:31], s[0:1], 96")
    a.I("v_lshrrev_b32 v6, 6, v0")
    a.I("v_and_b32 v1, 63, v0")
    a.I("v_readfirstlane_b32 s3, v6")
    a.I(f"s_and_b32 s{sH}, s2, 7")
    a.I(f"s_lshl_b32 s{sH}, s{sH}, 1")
    a.I(f"s_bfe_u32 s{sT}, s2, 0x10003")
    a.I(f"s_add_u32 s{sH}, s{sH}, s{sT}")
    a.I(f"s_bfe_u32 s{sB}, s2, 0x10004")
    a.I(f"s_lshr_b32 s{sS}, s2, 5")
    a.I(f"s_lshl_b32 s{sJ}, s{sH}, 3")
    a.I(f"s_add_u32 s{sJ}, s{sJ}, s{sS}")
    a.I(f"s_lshl_b32 s{sROW}, s{sB}, 7")
    a.I(f"s_add_u32 s{sROW}, s{sROW}, s{sJ}")
    a.I(f"s_lshl_b32 s{sT}, s{sROW}, 18")
    a.I(f"s_mul_i32 s{sU}, s3, {o.gran}")
    a.I(f"s_add_u32 s{sT}, s{sT}, s{sU}")
    a.I("v_lshlrev_b32 v7, 4, v1")
    a.I(f"v_add_u32 v2, s{sT}, v7")
    a.I("s_mov_b32 s34, 0x4000000"); a.I("s_mov_b32 s35, 0x20000")
    a.I("s_waitcnt lgkmcnt(0)"); a.smem = False
    if o.ts: a.I(f"v_writelane_b32 v{VTS}, s96, 14")
    stamp()
    a.I("s_mov_b32 s32, s6"); a.I("s_mov_b32 s33, s7")
    NB0 = 64
    pool = list(range(NB0, 252, 4))
    buf = {}
    def alloc(tag):
        r = pool.pop(0); buf[tag] = r; return r
    def free(tag): pool.append(buf.pop(tag))
    last_so = [None]
    def set_so(v):
        if v == 0: return "0"
        if last_so[0] != v:
            a.I(f"s_mov_b32 s{sSO}, {v}"); last_so[0] = v
        return f"s{sSO}"
    def issue(tag):
        kind, i = tag
        r = alloc(tag)
        if kind in ("K", "V"):
            lpc = o.gran // 1024
            off = (i // lpc) * 8 * o.gran + (i % lpc) * 1024
            so = set_so(off & ~4095)
            sr = "s[32:35]" if kind == "K" else "s[36:39]"
            a.I(f"buffer_load_dwordx4 v[{r}:{r+3}], v2, {sr}, {so} offen offset:{off & 4095} {kvf}", tag)
        elif kind == "WQ":
            so = set_so(i * 8 * 8192)
            a.I(f"buffer_load_dwordx4 v[{r}:{r+3}], v3, s[40:43], {so} offen {o.pflags}", tag)
        elif kind == "W1":
            a.I(f"buffer_load_dwordx4 v[{r}:{r+3}], v20, s[48:51], 0 offen {o.pflags}", tag)
        elif kind == "WO":
            a.I(f"buffer_load_dwordx4 v[{r}:{r+3}], v4, s[44:47], 0 offen offset:{i*896} {wf}", tag)
        elif kind == "W2":
            a.I(f"buffer_load_dwordx4 v[{r}:{r+3}], v5, s[52:55], 0 offen offset:{i*896} {wf}", tag)
    stream = [("K", i) for i in range(32)] + [("V", i) for i in range(32)]
    pos = len(stream) - o.wo_early
    stream[pos:pos] = [("WO", i) for i in range(4)]
    stream += [("W2", 0), ("W2", 1)]
    nxt = [0]
    def slot():
        n = nxt[0]
        if n >= len(stream): return False
        if n >= D: a.wait_vm(stream[n - D])
        issue(stream[n]); nxt[0] += 1
        return True
    def landed(tag):
        return tag not in a.vm and stream.index(tag) < nxt[0]
    for _ in range(min(D, 4)): slot()
    if o.codepf:
        a.I("s_getpc_b64 s[98:99]")
        a.raw("L_pc:")
        a.I(f"s_lshr_b32 s{sT}, s2, 3")
        a.I(f"s_lshl_b32 s{sT}, s{sT}, 10")
        a.I(f"s_min_u32 s{sT}, s{sT}, L_end - L_pc - 1024")
        a.I(f"v_add_u32 v52, s{sT}, v7")
        a.I("s_cmp_lg_u32 s3, 7")
        a.I("s_cbranch_scc1 L_nopf")
        a.I("global_load_dwordx4 v[48:51], v52, s[98:99]"); a.vm.pop()
        a.label("L_nopf")
    srd(a, 40, 10, 448 * 8192)
    srd(a, 48, 16, 448 * 3584)
    srd(a, 60, 4, 1792)
    sCG, sRG, sCG1, sRG1 = sG, sOMG, sW, sRED
    a.I(f"s_and_b32 s{sCG}, s{sS}, 3")
    a.I(f"s_lshr_b32 s{sRG}, s{sS}, 2")
    a.I(f"s_lshl_b32 s{sT}, s{sB}, 1")
    a.I(f"s_add_u32 s{sRG}, s{sRG}, s{sT}")
    a.I(f"s_and_b32 s{sRG1}, s2, 7")
    a.I(f"s_lshr_b32 s{sCG1}, s2, 3")
    a.I("v_lshrrev_b32 v23, 3, v1")
    a.I("v_and_b32 v24, 7, v1")
    a.I("v_lshlrev_b32 v24, 4, v24")
    a.I(f"s_mul_i32 s{sT}, s{sRG}, 112")
    a.I(f"s_lshl_b32 s{sU}, s3, 4")
    a.I(f"s_add_u32 s{sT}, s{sT}, s{sU}")
    a.I(f"v_add_u32 v21, s{sT}, v23")
    a.I(f"s_lshl_b32 s{sT}, s{sH}, 9")
    a.I(f"s_lshl_b32 s{sU}, s{sCG}, 7")
    a.I(f"s_add_u32 s{sT}, s{sT}, s{sU}")
    a.I("s_cmp_eq_u32 s3, 7")
    a.I(f"s_cselect_b32 s{sT}, {OOB}, s{sT}")
    a.I("v_lshl_add_u32 v3, v21, 13, v24")
    a.I(f"v_add_u32 v3, s{sT}, v3")
    if o.x & 1: a.I(f"v_mov_b32 v3, {OOB}")
    issue(("WQ", 0)); issue(("WQ", 1))
    a.I(f"s_mul_i32 s{sT}, s{sRG1}, 56")
    a.I(f"s_lshl_b32 s{sU}, s3, 3")
    a.I(f"s_add_u32 s{sT}, s{sT}, s{sU}")
    a.I(f"v_add_u32 v22, s{sT}, v23")
    a.I(f"s_lshl_b32 s{sT}, s{sCG1}, 7")
    a.I("s_cmp_eq_u32 s3, 7")
    a.I(f"s_cselect_b32 s{sT}, {OOB}, s{sT}")
    a.I("s_cmp_ge_u32 s2, 224")
    a.I(f"s_cselect_b32 s{sT}, {OOB}, s{sT}")
    a.I("v_mul_u32_u24 v20, 0xe00, v22")
    a.I(f"v_add3_u32 v20, v20, v24, s{sT}")
    if o.x & 2: a.I(f"v_mov_b32 v20, {OOB}")
    issue(("W1", 0))
    a.I("v_lshlrev_b32 v21, 1, v21")
    a.I("v_lshlrev_b32 v22, 1, v22")
    for r, va, off in ((36, 21, 0), (37, 21, 16), (38, 21, 896), (39, 21, 912), (40, 22, 0), (41, 22, 896)):
        a.I(f"buffer_load_ushort v{r}, v{va}, s[60:63], 0 offen offset:{off}", ("X", r))
    srd(a, 56, 30, WS_TS + 0x20000 if o.ts else WS_END)
    a.I("v_mov_b32 v21, 0")
    a.I(f"buffer_load_dword v32, v21, s[56:59], 0 offen offset:{WS_EP} sc1", "EP")
    srd(a, 36, 8, 64 << 20)
    srd(a, 44, 12, 4096 * 896)
    srd(a, 52, 20, 1792 * 896)
    srd(a, 64, 24, 896)
    srd(a, 68, 22, 896)
    srd(a, 72, 26, 1792)
    a.I(f"s_lshl_b32 s{sBH}, s{sB}, 4")
    a.I(f"s_add_u32 s{sBH}, s{sBH}, s{sH}")
    a.I(f"s_min_u32 s{sT}, s{sJ}, 111")
    a.I(f"s_lshl_b32 s{sT}, s{sT}, 5")
    a.I(f"s_lshl_b32 s{sU}, s3, 2")
    a.I(f"s_add_u32 s{sT}, s{sT}, s{sU}")
    a.I(f"s_add_u32 s18, s18, s{sT}")
    a.I("s_addc_u32 s19, s19, 0")
    a.I(f"s_load_dword s{sB1}, s[18:19], 0")
    a.I("v_cmp_gt_u32 vcc, 56, v1")
    a.I(f"v_mov_b32 v25, {OOB}")
    a.I("v_cndmask_b32 v25, v25, v7, vcc")
    a.I(f"s_lshl_b32 s{sT}, s{sJ}, 3")
    a.I(f"s_add_u32 s{sT}, s{sT}, s3")
    a.I(f"s_mul_i32 s{sU}, s{sT}, 1792")
    a.I(f"v_add_u32 v5, s{sU}, v25")
    a.I(f"s_mul_i32 s{sU}, s{sT}, 3584")
    a.I(f"v_add_u32 v4, s{sU}, v25")
    if o.x & 4: a.I(f"v_mov_b32 v4, {OOB}")
    if o.x & 8: a.I(f"v_mov_b32 v5, {OOB}")
    if o.pretouch:
        a.I("s_mov_b64 exec, 1")
        a.I(f"buffer_load_dword v52, v2, s[36:39], 0 offen {kvf}")
        a.I("buffer_load_dword v52, v4, s[44:47], 0 offen")
        a.I("buffer_load_dword v52, v5, s[52:55], 0 offen")
        a.I("buffer_load_dword v52, v21, s[72:75], 0 offen")
        for off in (WS_O + 0x40000, WS_O2 + 0x40000, WS_P + 0x40000, WS_P + 0xc0000):
            so = set_so(off)
            a.I(f"buffer_load_dword v52, v21, s[56:59], {so} offen")
        a.I("s_mov_b64 exec, -1")
    a.I("v_lshrrev_b32 v6, 5, v1")
    a.I(f"s_mov_b32 s{sSELL}, 0x05040100")
    a.I(f"s_mov_b32 s{sSELH}, 0x07060302")
    a.I(f"s_mov_b32 s{sM3}, 0xcccccccc"); a.I(f"s_mov_b32 s{sM3+1}, 0xcccccccc")
    a.I(f"s_mov_b32 s{sM4}, 0xaaaaaaaa"); a.I(f"s_mov_b32 s{sM4+1}, 0xaaaaaaaa")
    a.I("s_cmp_ge_u32 s2, 56")
    a.I(f"s_cselect_b32 s{sBT}, 1, 0")
    a.I(f"s_mul_i32 s{sT}, s{sBT}, 56")
    a.I(f"s_sub_u32 s{sTASK}, s2, s{sT}")
    a.I(f"s_mul_i32 s{sT}, s{sBT}, 896")
    gx, gg = alloc("GX"), alloc("GG")
    a.I(f"buffer_load_dwordx4 v[{gx}:{gx+3}], v25, s[60:63], s{sT} offen", "GX")
    a.I(f"buffer_load_dwordx4 v[{gg}:{gg+3}], v25, s[64:67], 0 offen", "GG")
    a.I(f"s_lshl_b32 s{sU}, s{sTASK}, 4")
    a.I("v_and_b32 v21, 14, v1")
    a.I(f"buffer_load_ushort v33, v21, s[68:71], s{sU} offen", "B2")
    a.I("v_and_b32 v11, 7, v1")
    a.I("v_lshlrev_b32 v11, 3, v11")
    a.I("v_lshrrev_b32 v12, 4, v1")
    a.I("v_bfe_u32 v13, v1, 3, 1")
    a.I("v_lshl_add_u32 v12, v13, 2, v12")
    a.I("v_add_u32 v11, v11, v12")
    a.I(f"s_lshl_b32 s{sT}, s3, 8")
    a.I(f"v_lshl_add_u32 v34, v11, 2, s{sT}")
    a.I(f"s_lshl_b32 s{sT}, s3, 2")
    a.I(f"v_mov_b32 v31, s{sT}")
    a.I(f"s_lshl_b32 s{sT}, s{sH}, 13")
    a.I(f"s_lshl_b32 s{sU}, s{sCG}, 9")
    a.I(f"s_add_u32 s{sT}, s{sT}, s{sU}")
    a.I(f"s_lshl_b32 s{sU}, s{sRG}, 11")
    a.I(f"s_add_u32 s{sT}, s{sT}, s{sU}")
    a.I(f"s_add_u32 s{sCG}, s{sT}, {WS_Q}")
    a.I(f"s_lshl_b32 s{sT}, s{sCG1}, 9")
    a.I(f"s_mul_i32 s{sU}, s{sRG1}, 14336")
    a.I(f"s_add_u32 s{sT}, s{sT}, s{sU}")
    a.I(f"s_add_u32 s{sT}, s{sT}, {WS_H}")
    a.I("s_cmp_ge_u32 s2, 224")
    a.I(f"s_cselect_b32 s{sT}, {OOB}, s{sT}")
    a.I("s_cmp_eq_u32 s3, 0")
    a.I(f"s_cselect_b32 s{sCG}, s{sCG}, s{sT}")
    a.I(f"s_mov_b32 s{sT}, 114688")
    a.I(f"s_cselect_b32 s{sT}, 0x20000, s{sT}")
    a.I("v_and_b32 v30, 31, v1")
    a.I(f"v_lshlrev_b32 v30, 4, v30")
    a.I(f"v_mul_lo_u32 v11, v6, s{sT}")
    a.I(f"v_add3_u32 v30, v30, v11, s{sCG}")
    while nxt[0] < o.s_proj: slot()
    a.wait_vm("EP")
    a.I(f"v_readfirstlane_b32 s{sT}, v32")
    a.I(f"s_mul_i32 s{sTAG}, s{sT}, 0x9E3779B1")
    a.I(f"s_add_u32 s{sTAG}, s{sTAG}, 0x7F4A7C15")
    a.I(f"v_mov_b32 v32, s{sTAG}")
    for k in range(6): a.I(f"v_lshlrev_b32 v{42+k}, 16, v{36+k}")
    def proj(srcs, st):
        for n, (tag, x) in enumerate(srcs):
            r = buf[tag]
            for e in range(4):
                a.I(f"v_dot2_f32_bf16 v{8+2*e}, v{r+e}, v{x}, {'0' if n == 0 else f'v{8+2*e}'}")
                a.I(f"v_dot2_f32_bf16 v{9+2*e}, v{r+e}, v{x+6}, {'0' if n == 0 else f'v{9+2*e}'}")
        for e in range(4): a.I(f"v_permlane16_swap_b32 v{8+2*e}, v{9+2*e}")
        for e in range(4): a.I(f"v_add_f32 v{8+2*e}, v{8+2*e}, v{9+2*e}")
        a.I("v_permlane32_swap_b32 v8, v10"); a.I("v_permlane32_swap_b32 v12, v14")
        a.I("v_add_f32 v8, v8, v10"); a.I("v_add_f32 v12, v12, v14")
        t = 16 + st
        a.I(dpp("v_add_f32", t, 8, 8, "row_ror:8", bm="0x3"))
        a.I(dpp("v_add_f32", t, 12, 12, "row_ror:8", bm="0xc"))
        a.I(f"ds_write_b32 v34, v{t} offset:{RP + st*2048}")
    proj([(("WQ", 0), 36), (("WQ", 1), 37)], 0)
    proj([(("WQ", 0), 38), (("WQ", 1), 39)], 1)
    slot()
    proj([(("W1", 0), 40)], 2)
    proj([(("W1", 0), 41)], 3)
    for t in (("WQ", 0), ("WQ", 1), ("W1", 0)): free(t)
    slot()
    a.I("v_lshrrev_b32 v20, 5, v0")
    a.I("v_and_b32 v21, 31, v0")
    a.I("v_lshlrev_b32 v21, 3, v21")
    a.I("v_lshl_add_u32 v21, v20, 11, v21")
    a.wait_lg()
    a.I("s_barrier")
    def sum8_b64(addr, base, pitch):
        for w in range(8): a.I(f"ds_read_b64 v[{36+2*w}:{37+2*w}], v{addr} offset:{base + w*pitch}", ("s8", w))
        for lv in (1, 2, 4):
            for w in range(0, 8, 2*lv):
                if lv == 1: a.wait_lg(("s8", w + 1))
                for k in range(2): a.I(f"v_add_f32 v{36+2*w+k}, v{36+2*w+k}, v{36+2*(w+lv)+k}")
    a.I("s_cmp_ge_u32 s3, 2")
    a.I("s_cbranch_scc1 L_pjdone")
    sum8_b64(21, RP, 256)
    a.I("v_mov_b32 v38, v37"); a.I("v_mov_b32 v37, v32"); a.I("v_mov_b32 v39, v32")
    a.I("buffer_store_dwordx4 v[36:39], v30, s[56:59], 0 offen sc1"); a.vm.pop()
    a.label("L_pjdone")
    slot()
    a.wait_vm("B2")
    for e in range(4):
        a.I(f"v_lshlrev_b32 v20, 16, v{gx+e}"); a.I(f"v_and_b32 v21, 0xffff0000, v{gx+e}")
        a.I(f"v_lshlrev_b32 v22, 16, v{gg+e}"); a.I(f"v_and_b32 v23, 0xffff0000, v{gg+e}")
        a.I("v_mul_f32 v20, v20, v22"); a.I("v_mul_f32 v21, v21, v23")
        a.I(f"v_cvt_pk_bf16_f32 v{8+e}, v20, v21")
    for e in range(4):
        a.I(f"v_lshlrev_b32 v20, 16, v{8+e}"); a.I(f"v_and_b32 v21, 0xffff0000, v{8+e}")
        a.I(f"v_add_f32 v{8+e}, v20, v21")
    a.I("v_add_f32 v8, v8, v9"); a.I("v_add_f32 v10, v10, v11"); a.I("v_add_f32 v8, v8, v10")
    free("GX"); free("GG")
    slot()
    wave_reduce63(a, "v_add_f32", 8)
    a.I("v_cvt_pk_bf16_f32 v8, v8, v8")
    a.I("v_and_b32 v8, 0xffff0000, v8")
    a.I(f"v_mul_f32 v8, {hex(f2u(-1.4426950408889634))}, v8")
    a.I("v_exp_f32 v8, v8")
    a.I("v_add_f32 v8, 1.0, v8")
    a.I("v_rcp_f32 v8, v8")
    a.I("v_cvt_pk_bf16_f32 v8, v8, v8")
    a.I("v_and_b32 v8, 0xffff0000, v8")
    a.I("v_sub_f32 v9, 1.0, v8")
    a.I("v_cvt_pk_bf16_f32 v9, v9, v9")
    a.I("v_and_b32 v9, 0xffff0000, v9")
    a.I(f"v_readlane_b32 s{sG}, v8, 63")
    a.I(f"v_readlane_b32 s{sOMG}, v9, 63")
    a.I("s_cmp_lt_u32 s2, 112")
    a.I(f"s_cselect_b32 s{sRED}, 1, 0")
    a.I("v_lshlrev_b32 v33, 16, v33")
    a.I(f"v_mov_b32 v56, s{sG}")
    a.I(f"v_mov_b32 v8, s{sOMG}")
    a.I(f"v_cndmask_b32 v33, 0, v33, s[{sM4}:{sM4+1}]")
    a.I(f"v_cndmask_b32 v56, v56, v8, s[{sM4}:{sM4+1}]")
    stamp()
    def poll_check(name, regs, mask, reissue, sleep=2):
        a.I(f"s_mov_b32 s{sCNT}, {SPIN}")
        a.label(f"L_{name}chk")
        a.I(f"v_cmp_ne_u32 vcc, v{regs[0]}, v32")
        for r in regs[1:]:
            a.I(f"v_cmp_ne_u32 s[98:99], v{r}, v32")
            a.I("s_or_b64 vcc, vcc, s[98:99]")
        if mask != -1:
            a.I(f"s_and_b64 vcc, vcc, {mask}")
        else:
            a.I("s_cmp_lg_u64 vcc, 0")
        a.I(f"s_cbranch_scc0 L_{name}ok")
        a.I(f"s_sub_u32 s{sCNT}, s{sCNT}, 1")
        a.I(f"s_cbranch_scc1 L_{name}ok")
        if sleep: a.I(f"s_sleep {sleep}")
        n0 = len(a.vm)
        reissue()
        a.vm = a.vm[:n0]
        a.I("s_waitcnt vmcnt(0)")
        a.I(f"s_branch L_{name}chk")
        a.label(f"L_{name}ok")
    while nxt[0] < o.s_poll: slot()
    a.I(f"s_lshl_b32 s{sW}, s{sBH}, 13")
    a.I(f"s_add_u32 s{sW}, s{sW}, {WS_Q}")
    a.I("v_and_b32 v22, 3, v0")
    a.I("v_lshlrev_b32 v22, 11, v22")
    a.I("v_and_b32 v21, 0x1fc, v0")
    a.I("v_lshl_add_u32 v22, v21, 2, v22")
    qp = lambda tag=None: a.I(f"buffer_load_dwordx4 v[8:11], v22, s[56:59], s{sW} offen sc1", tag)
    qp("QP")
    a.I(f"s_mul_i32 s{sT}, s{sB}, 7168")
    a.I(f"s_lshl_b32 s{sU}, s{sJ}, 3")
    a.I(f"s_add_u32 s{sT}, s{sT}, s{sU}")
    a.I(f"s_add_u32 s{sT}, s{sT}, s3")
    a.I(f"s_lshl_b32 s{sT}, s{sT}, 4")
    a.I(f"s_add_u32 s{sT}, s{sT}, {WS_H}")
    a.I(f"s_cmp_ge_u32 s{sJ}, 112")
    a.I(f"s_cselect_b32 s{sT}, {OOB}, s{sT}")
    a.I("v_cmp_gt_u32 vcc, 8, v1")
    a.I(f"v_mov_b32 v20, {OOB}")
    a.I("v_mul_u32_u24 v21, 0x3800, v1")
    a.I(f"v_add_u32 v21, s{sT}, v21")
    a.I("v_cndmask_b32 v20, v20, v21, vcc")
    hp = lambda tag=None: a.I("buffer_load_dwordx4 v[12:15], v20, s[56:59], 0 offen sc1", tag)
    hp("HP")
    for _ in range(D): slot()
    a.wait_vm("HP")
    poll_check("q", [9, 11], -1, qp)
    for c in ("quad_perm:[1,0,3,2]", "quad_perm:[2,3,0,1]"):
        a.I(dpp("v_add_f32", 8, 8, 8, c)); a.I(dpp("v_add_f32", 10, 10, 10, c))
    a.I("v_cvt_pk_bf16_f32 v8, v8, v10")
    a.I("v_and_b32 v21, 0x1fc, v0")
    a.I(f"ds_write_b32 v21, v8 offset:{QS}")
    a.I(f"s_cmp_ge_u32 s{sJ}, 112")
    a.I("s_cbranch_scc1 L_hok")
    poll_check("h", [13, 15], "0xff", hp)
    slot()
    a.wait_lg()
    a.I("s_barrier")
    stamp()
    a.I("v_and_b32 v24, 31, v1")
    a.I("v_lshlrev_b32 v24, 4, v24")
    a.I(f"ds_read_b128 v[16:19], v24 offset:{QS}", "q")
    a.I("v_lshlrev_b32 v28, 1, v24")
    a.I("v_lshl_add_u32 v28, v6, 4, v28")
    a.I(f"s_lshl_b32 s{sT}, s3, 10")
    a.I(f"v_add_u32 v28, s{sT}, v28")
    a.I(f"s_mul_i32 s{sT}, s3, {OPW}")
    a.I(f"v_add_u32 v29, s{sT}, v7")
    for c in ("quad_perm:[1,0,3,2]", "quad_perm:[2,3,0,1]", "row_half_mirror"):
        a.I(dpp("v_add_f32", 12, 12, 12, c)); a.I(dpp("v_add_f32", 14, 14, 14, c))
    a.I("v_cvt_pk_bf16_f32 v20, v12, v14")
    a.I(f"s_lshl_b32 s{sT}, s{sB1}, 16")
    a.I(f"s_and_b32 s{sU}, s{sB1}, 0xffff0000")
    a.I("v_lshlrev_b32 v21, 16, v20"); a.I("v_and_b32 v22, 0xffff0000, v20")
    a.I(f"v_add_f32 v21, s{sT}, v21"); a.I(f"v_add_f32 v22, s{sU}, v22")
    a.I("v_cvt_pk_bf16_f32 v20, v21, v22")
    a.I("v_lshlrev_b32 v21, 16, v20"); a.I("v_and_b32 v22, 0xffff0000, v20")
    a.I("v_max_f32 v21, 0, v21"); a.I("v_max_f32 v22, 0, v22")
    a.I("v_mul_f32 v21, v21, v21"); a.I("v_mul_f32 v22, v22, v22")
    a.I("v_cvt_pk_bf16_f32 v20, v21, v22")
    a.I(f"v_readfirstlane_b32 s{sB1}, v20")
    slot()
    a.wait_lg()
    lvl = {}
    tfree = [20, 21, 22, 23, 26, 27, 8, 9, 10, 11, 12, 13]
    def merge(level, A, B):
        if level == 0:
            a.I(f"v_permlane16_swap_b32 v{A}, v{B}")
            a.I(f"v_add_f32 v{A}, v{A}, v{B}")
            tfree.append(B); return A
        if level in (1, 2):
            R = tfree.pop(0)
            if level == 1:
                a.I(dpp("v_add_f32", R, A, A, "row_ror:8", bm="0x3"))
                a.I(dpp("v_add_f32", R, B, B, "row_ror:8", bm="0xc"))
            else:
                a.I(dpp("v_add_f32", R, A, A, "row_shl:4", bm="0x5"))
                a.I(dpp("v_add_f32", R, B, B, "row_shr:4", bm="0xa"))
            tfree.extend([A, B]); return R
        q = "quad_perm:[2,3,0,1]" if level == 3 else "quad_perm:[1,0,3,2]"
        m = f"s[{sM3}:{sM3+1}]" if level == 3 else f"s[{sM4}:{sM4+1}]"
        a.I(dpp("v_add_f32", A, A, A, q))
        a.I(dpp("v_add_f32", B, B, B, q))
        a.I(f"v_cndmask_b32 v{A}, v{A}, v{B}, {m}")
        tfree.append(B); return A
    def kcons(i):
        a.wait_vm(("K", i))
        r = buf[("K", i)]
        t = tfree.pop(0)
        a.I(f"v_dot2_f32_bf16 v{t}, v{r}, v16, 0")
        for e in range(1, 4): a.I(f"v_dot2_f32_bf16 v{t}, v{r+e}, v{16+e}, v{t}")
        free(("K", i))
        L = 0
        while L in lvl:
            t = merge(L, lvl.pop(L), t); L += 1
        lvl[L] = t
    kd = 0
    while kd < 32:
        c = 0
        while kd < 32 and c < o.kps and landed(("K", kd)):
            kcons(kd); kd += 1; c += 1
        if kd < 32: slot()
    vS = lvl[5]
    a.I(f"v_cvt_pk_bf16_f32 v{vS}, v{vS}, v{vS}")
    a.I(f"v_and_b32 v30, 0xffff0000, v{vS}")
    a.I("v_mov_b32 v20, v30")
    wave_reduce63(a, "v_max_f32", 20)
    a.I(f"v_readlane_b32 s{sT}, v20, 63")
    a.I(f"v_mov_b32 v20, s{sT}")
    a.I(f"ds_write_b32 v31, v20 offset:{MX}")
    slot()
    a.wait_lg()
    stamp()
    a.I("s_barrier")
    a.I("v_mov_b32 v21, 0")
    a.I(f"ds_read_b128 v[8:11], v21 offset:{MX}")
    a.I(f"ds_read_b128 v[12:15], v21 offset:{MX+16}")
    a.I("v_bfrev_b32 v22, v1")
    a.I("v_bfe_u32 v22, v22, 27, 5")
    a.I("v_lshlrev_b32 v22, 2, v22")
    a.I(f"s_lshl_b32 s{sT}, s3, 8")
    a.I(f"v_lshl_add_u32 v23, v6, 7, s{sT}")
    a.I("v_add_u32 v22, v22, v23")
    a.wait_lg()
    a.I("v_max3_f32 v8, v8, v9, v10"); a.I("v_max3_f32 v12, v12, v13, v14"); a.I("v_max3_f32 v8, v8, v11, v15")
    a.I("v_max_f32 v34, v8, v12")
    a.I("v_sub_f32 v20, v30, v34")
    a.I(f"v_mul_f32 v20, {hex(f2u(C_SCALE))}, v20")
    a.I("v_exp_f32 v20, v20")
    a.I(f"ds_write_b32 v22, v20 offset:{PS}")
    a.I("v_mov_b32 v21, v20")
    wave_reduce63(a, "v_add_f32", 21)
    a.I(f"v_readlane_b32 s{sT}, v21, 63")
    a.I(f"v_mov_b32 v21, s{sT}")
    a.I(f"ds_write_b32 v31, v21 offset:{LW}")
    slot()
    a.I("v_lshlrev_b32 v59, 3, v0")
    a.I("v_lshlrev_b32 v58, 4, v0")
    a.I("v_cmp_gt_u32 vcc, 0x1c0, v0")
    a.I(f"v_mov_b32 v22, {OOB}")
    a.I(f"s_mul_i32 s{sT}, s{sROW}, 7168")
    a.I(f"v_add_u32 v58, s{sT}, v58")
    a.I("v_cndmask_b32 v58, v22, v58, vcc")
    a.I("v_bfe_u32 v53, v0, 1, 2")
    a.I("v_mul_u32_u24 v53, 0x440, v53")
    a.I("v_lshrrev_b32 v22, 3, v0")
    a.I("v_lshl_add_u32 v53, v22, 4, v53")
    a.I("v_and_b32 v22, 1, v0")
    a.I("v_lshl_add_u32 v53, v22, 3, v53")
    slot()
    a.wait_lg()
    a.I("s_barrier")
    a.I("v_mov_b32 v21, 0")
    a.I(f"ds_read_b128 v[40:43], v21 offset:{LW}", "l0")
    a.I(f"ds_read_b128 v[44:47], v21 offset:{LW+16}", "l1")
    PB = [16, 24]
    a.I(f"ds_read_b128 v[16:19], v23 offset:{PS}", ("p", 0))
    a.I("v_cmp_eq_u32 vcc, 0x140, v0")
    a.I(f"v_mov_b32 v22, {OOB}")
    a.I("v_cndmask_b32 v22, v22, v21, vcc")
    a.I(f"s_lshl_b32 s{sT}, s{sROW}, 7")
    a.I(f"s_add_u32 s{sT}, s{sT}, {WS_ML}")
    a.wait_lg("l1")
    a.I("v_add_f32 v40, v40, v41"); a.I("v_add_f32 v42, v42, v43"); a.I("v_add_f32 v44, v44, v45"); a.I("v_add_f32 v46, v46, v47")
    a.I("v_add_f32 v40, v40, v42"); a.I("v_add_f32 v44, v44, v46"); a.I("v_add_f32 v42, v40, v44")
    a.I("v_mov_b32 v40, v34"); a.I("v_mov_b32 v41, v32"); a.I("v_mov_b32 v43, v32")
    a.I(f"buffer_store_dwordx4 v[40:43], v22, s[56:59], s{sT} offen sc1", "MLST")
    def vcons(i):
        if i % 4 == 0:
            c = i // 4
            if c + 1 < 8:
                nb = PB[(c + 1) & 1]
                a.I(f"ds_read_b128 v[{nb}:{nb+3}], v23 offset:{PS + (c+1)*16}", ("p", c + 1))
            a.wait_lg(("p", c))
        a.wait_vm(("V", i))
        r = buf[("V", i)]
        p = PB[(i // 4) & 1] + (i % 4)
        for e in range(4 if not (o.x & 16) else 1):
            a.I(f"v_lshlrev_b32 v20, 16, v{r+e}")
            a.I(f"v_and_b32 v21, 0xffff0000, v{r+e}")
            op = "v_mul_f32" if i == 0 else "v_fmac_f32"
            a.I(f"{op} v{8+2*e}, v20, v{p}")
            a.I(f"{op} v{9+2*e}, v21, v{p}")
        free(("V", i))
    vd = 0
    mlstate = 0
    def ml_issue(tag=None):
        a.I(f"buffer_load_dwordx4 v[36:39], v22, s[56:59], s{sW} offen sc1", tag)
    def red_part(A, B, base):
        a.I(f"v_add_f32 v{A}, v{A}, v{B}"); a.I(f"v_add_f32 v{A+2}, v{A+2}, v{B+2}")
        a.I(f"v_permlane16_swap_b32 v{A}, v{A+2}")
        a.I(f"v_add_f32 v{A}, v{A}, v{A+2}")
        a.I(dpp("v_add_f32", A, A, A, "row_ror:8"))
        a.I(f"v_mov_b32 v{A+1}, v{A}")
        a.I(f"v_permlane32_swap_b32 v{A}, v{A+1}")
        a.I(f"v_add_f32 v{A}, v{A}, v{A+1}")
        a.I(f"ds_write_b32 v55, v{A} offset:{base}")
    def red_final(base, R):
        a.I(f"ds_read_b32 v{R}, v54 offset:{base}")
        a.I(f"ds_read_b32 v{R+1}, v54 offset:{base+64}")
        a.wait_lg()
        a.I(f"v_add_f32 v{R}, v{R}, v{R+1}")
        a.I(f"v_mov_b32 v{R+1}, v{R}")
        a.I(f"v_permlane16_swap_b32 v{R}, v{R+1}")
        a.I(f"v_add_f32 v{R}, v{R}, v{R+1}")
        a.I(f"v_mov_b32 v{R+1}, v{R}")
        a.I(f"v_permlane32_swap_b32 v{R}, v{R+1}")
        a.I(f"v_add_f32 v{R}, v{R}, v{R+1}")
    wp = {}
    while vd < 32:
        c = 0
        while vd < 32 and c < o.vps and (landed(("V", vd)) or nxt[0] >= len(stream)):
            vcons(vd); vd += 1; c += 1
        if mlstate == 0 and nxt[0] >= o.s_ml:
            a.I("v_and_b32 v22, 0x1b8, v0")
            a.I("v_cmp_eq_u32 vcc, 0, v22")
            a.I(f"v_mov_b32 v22, {OOB}")
            a.I("v_lshlrev_b32 v30, 7, v1")
            a.I("v_cndmask_b32 v22, v22, v30, vcc")
            a.I(f"s_lshl_b32 s{sW}, s{sBH}, 10")
            a.I(f"s_add_u32 s{sW}, s{sW}, {WS_ML}")
            ml_issue("MLP")
            a.I(f"s_lshl_b32 s{sT}, s{sBT}, 3")
            a.I(f"s_add_u32 s{sT}, s{sT}, s3")
            a.I(f"s_mul_i32 s{sT}, s{sT}, {16*7168}")
            a.I(f"s_lshl_b32 s{sU}, s{sTASK}, 7")
            a.I(f"s_add_u32 s{sT}, s{sT}, s{sU}")
            a.I(f"s_cmp_eq_u32 s{sRED}, 0")
            a.I(f"s_cselect_b32 s{sT}, {OOB}, s{sT}")
            a.I("v_lshrrev_b32 v62, 3, v1")
            a.I("v_mul_u32_u24 v62, 0x1c00, v62")
            a.I("v_and_b32 v63, 7, v1")
            a.I("v_lshl_add_u32 v62, v63, 4, v62")
            a.I(f"v_add_u32 v62, s{sT}, v62")
            a.I("v_bfe_u32 v55, v1, 4, 1")
            a.I("v_lshl_add_u32 v55, v63, 1, v55")
            a.I(f"s_lshl_b32 s{sT}, s3, 6")
            a.I(f"v_lshl_add_u32 v55, v55, 2, s{sT}")
            a.I(f"v_add_u32 v63, {8*7168}, v62")
            mlstate = 1
        elif mlstate == 1 and "MLP" not in a.vm:
            a.I("s_cmp_ge_u32 s3, 2")
            a.I("s_cbranch_scc1 L_mldone")
            poll_check("ml", [37, 39], "0xff", ml_issue)
            a.I("v_mov_b32 v37, v36")
            for cc in ("quad_perm:[1,0,3,2]", "quad_perm:[2,3,0,1]", "row_half_mirror"):
                a.I(dpp("v_max_f32", 37, 37, 37, cc))
            a.I("v_sub_f32 v36, v36, v37")
            a.I("v_sub_f32 v39, v34, v37")
            a.I(f"v_mul_f32 v36, {hex(f2u(C_SCALE))}, v36")
            a.I(f"v_mul_f32 v39, {hex(f2u(C_SCALE))}, v39")
            a.I("v_exp_f32 v36, v36")
            a.I("v_exp_f32 v39, v39")
            a.I("v_mul_f32 v38, v38, v36")
            for cc in ("quad_perm:[1,0,3,2]", "quad_perm:[2,3,0,1]", "row_half_mirror"):
                a.I(dpp("v_add_f32", 38, 38, 38, cc))
            a.I("v_rcp_f32 v38, v38")
            a.I("v_mul_f32 v38, v38, v39")
            a.I(f"v_readfirstlane_b32 s{sW}, v38")
            a.label("L_mldone")
            mlstate = 2
            a.I("v_and_b32 v57, 0x33, v1")
            a.I("v_cmp_eq_u32 vcc, 0, v57")
            a.I(f"v_mov_b32 v57, {OOB}")
            a.I("v_cndmask_b32 v57, v57, v1, vcc")
            a.I("v_and_b32 v54, 15, v1")
            a.I("v_lshrrev_b32 v22, 4, v1")
            a.I("v_lshlrev_b32 v54, 2, v54")
            a.I("v_lshl_add_u32 v54, v22, 7, v54")
            a.I(f"s_lshl_b32 s{sT}, s{sROW}, 11")
            a.I(f"v_lshl_add_u32 v60, v0, 4, s{sT}")
            a.I("v_cmp_gt_u32 vcc, 16, v1")
            a.I(f"s_lshl_b32 s{sU}, s{sBH}, 14")
            a.I(f"s_lshl_b32 s{sT}, s{sS}, 8")
            a.I(f"s_add_u32 s{sU}, s{sU}, s{sT}")
            a.I(f"s_lshl_b32 s{sT}, s3, 5")
            a.I(f"s_add_u32 s{sU}, s{sU}, s{sT}")
            a.I("v_lshrrev_b32 v61, 1, v1")
            a.I("v_and_b32 v22, 1, v1")
            a.I("v_lshlrev_b32 v22, 4, v22")
            a.I("v_lshl_add_u32 v61, v61, 11, v22")
            a.I(f"v_add_u32 v61, s{sU}, v61")
            a.I(f"v_mov_b32 v22, {OOB}")
            a.I("v_cndmask_b32 v61, v22, v61, vcc")
        elif mlstate == 2 and not wp and landed(("WO", 3)):
            spare = [30]
            for j in range(2):
                A = [buf[("WO", 2*j)] + e for e in range(4)]; B = [buf[("WO", 2*j+1)] + e for e in range(4)]
                out = []
                for e in range(4):
                    t = spare.pop(0)
                    a.I(f"v_perm_b32 v{t}, v{B[e]}, v{A[e]}, s{sSELL}")
                    a.I(f"v_perm_b32 v{B[e]}, v{B[e]}, v{A[e]}, s{sSELH}")
                    spare.append(A[e]); out += [t, B[e]]
                wp[j] = out
        slot()
    assert mlstate == 2
    while slot(): pass
    stamp()
    ACC = pool[0]
    for r in range(64, 240, 4):
        if all((r + 4*k) in pool for k in range(4)): ACC = r; break
    else: raise Exception("no acc block")
    for k in range(4): a.I(f"v_permlane32_swap_b32 v{8+k}, v{12+k}")
    for k in range(4): a.I(f"v_add_f32 v{8+k}, v{8+k}, v{12+k}")
    a.I(f"ds_write_b128 v28, v[8:11] offset:{OA}")
    a.I(f"s_mov_b32 s{sT}, {WS_O}")
    a.I(f"s_mov_b32 s{sU}, {WS_O2}")
    a.wait_lg()
    a.I("s_barrier")
    a.I("s_cmp_ge_u32 s3, 2")
    a.I("s_cbranch_scc1 L_odone")
    sum8_b64(59, OA, 1024)
    a.I(f"v_mul_f32 v38, s{sW}, v37")
    a.I(f"v_mul_f32 v36, s{sW}, v36")
    a.I("v_mov_b32 v37, v32"); a.I("v_mov_b32 v39, v32")
    if o.dual:
        a.I(f"buffer_store_dwordx4 v[36:39], v60, s[56:59], s{sU} offen"); a.vm.pop()
    a.I(f"buffer_store_dwordx4 v[36:39], v60, s[56:59], s{sT} offen sc1"); a.vm.pop()
    a.label("L_odone")
    stamp()
    if not wp:
        a.wait_vm(("WO", 3))
        spare = [30]
        for j in range(2):
            A = [buf[("WO", 2*j)] + e for e in range(4)]; B = [buf[("WO", 2*j+1)] + e for e in range(4)]
            out = []
            for e in range(4):
                t = spare.pop(0)
                a.I(f"v_perm_b32 v{t}, v{B[e]}, v{A[e]}, s{sSELL}")
                a.I(f"v_perm_b32 v{B[e]}, v{B[e]}, v{A[e]}, s{sSELH}")
                spare.append(A[e]); out += [t, B[e]]
            wp[j] = out
    a.wait_vm(("W2", 1))
    A = [buf[("W2", 0)] + e for e in range(4)]; B = [buf[("W2", 1)] + e for e in range(4)]
    for e in range(4):
        a.I(f"v_perm_b32 v20, v{B[e]}, v{A[e]}, s{sSELL}")
        a.I(f"v_perm_b32 v21, v{B[e]}, v{A[e]}, s{sSELH}")
        a.I(f"v_dot2_f32_bf16 v{ACC+1+4*e}, v20, s{sB1}, 0")
        a.I(f"v_dot2_f32_bf16 v{ACC+3+4*e}, v21, s{sB1}, 0")
    a.I(f"s_mov_b32 s{sCNT}, {SPIN}")
    a.label("L_opoll")
    if o.dual:
        a.I(f"buffer_load_dwordx4 v[16:19], v61, s[56:59], s{sU} offen sc1")
        a.I("s_waitcnt vmcnt(0)")
        a.I("v_cmp_ne_u32 vcc, v17, v32")
        a.I("v_cmp_ne_u32 s[98:99], v19, v32")
        a.I("s_or_b64 vcc, vcc, s[98:99]")
        a.I("s_and_b32 s98, vcc_lo, 0xffff")
        a.I("s_cbranch_scc0 L_ook")
        a.I(f"s_sub_u32 s{sCNT}, s{sCNT}, 1")
        a.I("s_cbranch_scc1 L_ook")
        a.I(f"s_and_b32 s98, s{sCNT}, {o.dual - 1}")
        a.I("s_cbranch_scc1 L_opoll")
        a.I(f"buffer_load_dwordx4 v[24:27], v61, s[56:59], s{sT} offen sc1")
        a.I("s_waitcnt vmcnt(0)")
        for k in range(4): a.I(f"v_cndmask_b32 v{16+k}, v{16+k}, v{24+k}, vcc")
    else:
        a.I(f"buffer_load_dwordx4 v[16:19], v61, s[56:59], s{sT} offen sc1")
        a.I("s_waitcnt vmcnt(0)")
    a.I("v_cmp_ne_u32 vcc, v17, v32")
    a.I("v_cmp_ne_u32 s[98:99], v19, v32")
    a.I("s_or_b64 vcc, vcc, s[98:99]")
    a.I("s_and_b32 s98, vcc_lo, 0xffff")
    a.I("s_cbranch_scc0 L_ook")
    if o.osleep: a.I(f"s_sleep {o.osleep}")
    a.I(f"s_sub_u32 s{sCNT}, s{sCNT}, 1")
    a.I("s_cbranch_scc0 L_opoll")
    a.label("L_ook")
    a.vm = []
    stamp()
    a.I(dpp("v_add_f32", 16, 16, 16, "quad_perm:[2,3,0,1]"))
    a.I(dpp("v_add_f32", 18, 18, 18, "quad_perm:[2,3,0,1]"))
    a.I(dpp("v_add_f32", 16, 16, 16, "row_ror:4"))
    a.I(dpp("v_add_f32", 18, 18, 18, "row_ror:4"))
    a.I(dpp("v_add_f32", 16, 16, 16, "row_ror:8"))
    a.I(dpp("v_add_f32", 18, 18, 18, "row_ror:8"))
    a.I("v_cvt_pk_bf16_f32 v16, v16, v18")
    a.I(f"v_readlane_b32 s{sT}, v16, 0")
    a.I(f"v_readlane_b32 s{sU}, v16, 1")
    for c in range(8): a.I(f"v_dot2_f32_bf16 v{ACC+2*c}, v{wp[0][c]}, s{sT}, 0")
    for c in range(8): a.I(f"v_dot2_f32_bf16 v{ACC+2*c}, v{wp[1][c]}, s{sU}, v{ACC+2*c}")
    for k in range(4): a.I(f"ds_write_b128 v29, v[{ACC+4*k}:{ACC+4*k+3}] offset:{OP + 1088*k}")
    a.I(f"s_mov_b32 s{sT}, {WS_P}")
    a.wait_lg()
    a.I("s_barrier")
    a.I("s_cmp_ge_u32 s3, 7")
    a.I("s_cbranch_scc1 L_ppub")
    sum8_b64(53, OP, OPW)
    a.I("v_mov_b32 v38, v37"); a.I("v_mov_b32 v37, v32"); a.I("v_mov_b32 v39, v32")
    a.I(f"buffer_store_dwordx4 v[36:39], v58, s[56:59], s{sT} offen sc1"); a.vm.pop()
    a.label("L_ppub")
    stamp()
    a.I(f"s_cmp_eq_u32 s{sRED}, 0")
    a.I("s_cbranch_scc1 L_fin")
    a.I(f"s_mov_b32 s{sCNT}, {SPIN}")
    a.I("s_mov_b64 s[4:5], -1")
    a.I("s_mov_b64 s[6:7], -1")
    a.label("L_rpoll")
    a.I("s_mov_b64 exec, s[4:5]")
    a.I("s_cbranch_execz L_rp1")
    a.I(f"buffer_load_dwordx4 v[8:11], v62, s[56:59], s{sT} offen sc1")
    a.label("L_rp1")
    a.I("s_mov_b64 exec, s[6:7]")
    a.I("s_cbranch_execz L_rp2")
    a.I(f"buffer_load_dwordx4 v[12:15], v63, s[56:59], s{sT} offen sc1")
    a.label("L_rp2")
    a.I("s_mov_b64 exec, -1")
    a.I("s_waitcnt vmcnt(0)"); a.vm = []
    a.I("v_cmp_ne_u32 s[4:5], v9, v32")
    a.I("v_cmp_ne_u32 vcc, v11, v32")
    a.I("v_cmp_ne_u32 s[6:7], v13, v32")
    a.I("v_cmp_ne_u32 s[98:99], v15, v32")
    a.I("s_or_b64 s[4:5], s[4:5], vcc")
    a.I("s_or_b64 s[6:7], s[6:7], s[98:99]")
    a.I("s_or_b64 vcc, s[4:5], s[6:7]")
    a.I("s_cbranch_scc0 L_rok")
    a.I("s_bcnt1_i32_b64 s98, vcc")
    a.I(f"s_cmp_lt_u32 s98, {o.rthr}")
    a.I("s_cbranch_scc1 L_rshort")
    a.I(f"s_sleep {o.rsleep}")
    a.label("L_rshort")
    if o.rsleep0: a.I(f"s_sleep {o.rsleep0}")
    a.I(f"s_sub_u32 s{sCNT}, s{sCNT}, 1")
    a.I("s_cbranch_scc0 L_rpoll")
    a.label("L_rok")
    red_part(8, 12, RF)
    a.wait_lg()
    a.I("s_barrier")
    a.I("s_cmp_lg_u32 s3, 7")
    a.I("s_cbranch_scc1 L_fin")
    red_final(RF, 8)
    a.I("v_cvt_pk_bf16_f32 v8, v8, v8")
    a.I("v_and_b32 v8, 0xffff0000, v8")
    a.I("v_add_f32 v8, v8, v33")
    a.I("v_cvt_pk_bf16_f32 v8, v8, v8")
    a.I("v_and_b32 v8, 0xffff0000, v8")
    a.I("v_mul_f32 v8, v8, v56")
    a.I("v_cvt_pk_bf16_f32 v8, v8, v8")
    a.I("v_and_b32 v8, 0xffff0000, v8")
    a.I(dpp("v_add_f32", 8, 8, 8, "quad_perm:[1,0,3,2]"))
    a.I("v_mov_b32_dpp v9, v8 quad_perm:[2,3,0,1] row_mask:0xf bank_mask:0xf")
    a.I("v_cvt_pk_bf16_f32 v8, v8, v9")
    a.I(f"s_lshl_b32 s{sU}, s2, 4")
    a.I(f"buffer_store_dword v8, v57, s[72:75], s{sU} offen")
    a.I("s_cmp_lg_u32 s2, 0")
    a.I("s_cbranch_scc1 L_fin")
    a.I("v_mov_b32 v9, 0")
    a.I("s_mov_b64 exec, 1")
    a.I(f"buffer_store_dword v32, v9, s[56:59], 0 offen offset:{WS_EP} sc1")
    a.I("s_mov_b64 exec, -1")
    a.label("L_fin")
    if o.ts:
        stamp()
        a.I("s_getreg_b32 s98, hwreg(HW_REG_XCC_ID)")
        a.I(f"v_writelane_b32 v{VTS}, s98, 15")
        a.I("v_cmp_gt_u32 vcc, 16, v1")
        a.I(f"v_mov_b32 v21, {OOB}")
        a.I("v_lshlrev_b32 v20, 2, v1")
        a.I("v_cndmask_b32 v20, v21, v20, vcc")
        a.I("s_lshl_b32 s98, s2, 3"); a.I("s_add_u32 s98, s98, s3"); a.I("s_lshl_b32 s98, s98, 6")
        a.I(f"s_add_u32 s98, s98, {WS_TS}")
        a.I(f"buffer_store_dword v{VTS}, v20, s[56:59], s98 offen")
    a.label("L_end")
    a.I("s_endpgm")

def main():
    ap = argparse.ArgumentParser()
    ap.add_argument("-o", default="k.s")
    ap.add_argument("--kvflags", default="nt")
    ap.add_argument("--wflags", default="")
    ap.add_argument("--pflags", default="nt")
    ap.add_argument("--depth", type=int, default=4)
    ap.add_argument("--gran", type=int, default=4096)
    ap.add_argument("--s_proj", type=int, default=8)
    ap.add_argument("--s_w2", type=int, default=14)
    ap.add_argument("--s_poll", type=int, default=16)
    ap.add_argument("--s_ml", type=int, default=52)
    ap.add_argument("--wo_early", type=int, default=0)
    ap.add_argument("--kps", type=int, default=3)
    ap.add_argument("--vps", type=int, default=2)
    ap.add_argument("--dual", type=int, default=8)
    ap.add_argument("--osleep", type=int, default=1)
    ap.add_argument("--rthr", type=int, default=16)
    ap.add_argument("--rsleep", type=int, default=12)
    ap.add_argument("--rsleep0", type=int, default=1)
    ap.add_argument("--ts", type=int, default=0)
    ap.add_argument("--pretouch", type=int, default=0)
    ap.add_argument("--x", type=int, default=0)
    ap.add_argument("--markers", type=int, default=0)
    ap.add_argument("--codepf", type=int, default=0)
    ap.add_argument("--early", type=int, default=0)
    ap.add_argument("--list", type=int, default=1)
    o = ap.parse_args()
    a = Asm()
    a.raw(HDR.rstrip("\n"))
    if o.markers:
        a.raw(f"; @launch kernel=mk0_kernel grid=(256,1,1) block=(512,1,1) lds=0")
        a.raw(f"; @launch kernel={KN} grid=(256,1,1) block=(512,1,1) lds={LDS_BYTES}")
        a.raw(f"; @launch kernel=mk1_kernel grid=(1,1,1) block=(64,1,1) lds=0")
    elif o.list == 1:
        a.raw(f"; @launch grid=(256,1,1) block=(512,1,1) lds={LDS_BYTES}")
    else:
        for _ in range(o.list): a.raw(f"; @launch kernel={KN} grid=(256,1,1) block=(512,1,1) lds={LDS_BYTES}")
    a.raw('.amdgcn_target "amdgcn-amd-amdhsa--gfx950"')
    a.raw(".text")
    gen(a, o)
    if o.markers:
        for m in range(2):
            a.raw(f".globl mk{m}_kernel"); a.raw(".p2align 8"); a.raw(f".type mk{m}_kernel,@function"); a.raw(f"mk{m}_kernel:")
            a.raw("  s_cmp_lg_u32 s2, 0"); a.raw(f"  s_cbranch_scc1 L_mk{m}")
            a.raw("  s_memrealtime s[8:9]")
            a.raw("  s_load_dwordx2 s[4:5], s[0:1], 104"); a.raw("  s_waitcnt lgkmcnt(0)")
            a.raw("  s_memrealtime s[10:11]")
            a.raw("  s_mov_b32 s6, 0x500000"); a.raw("  s_mov_b32 s7, 0x20000"); a.raw("  s_waitcnt lgkmcnt(0)")
            a.raw("  v_mov_b32 v1, s8"); a.raw("  v_mov_b32 v2, s10"); a.raw(f"  v_mov_b32 v3, {0x420000 + m*8}")
            a.raw("  v_mov_b32 v4, v1"); a.raw("  v_mov_b32 v5, v2")
            a.raw("  buffer_store_dwordx2 v[4:5], v3, s[4:7], 0 offen")
            a.raw(f"L_mk{m}:"); a.raw("  s_endpgm")
    a.raw('.section .rodata,"a"'); a.raw(".p2align 6")
    if o.markers:
        for m in range(2):
            a.raw(f".amdhsa_kernel mk{m}_kernel")
            a.raw("  .amdhsa_next_free_vgpr 8"); a.raw("  .amdhsa_next_free_sgpr 16"); a.raw("  .amdhsa_accum_offset 8")
            a.raw("  .amdhsa_group_segment_fixed_size 0"); a.raw("  .amdhsa_kernarg_size 112"); a.raw("  .amdhsa_user_sgpr_count 2")
            a.raw("  .amdhsa_user_sgpr_kernarg_segment_ptr 1"); a.raw("  .amdhsa_system_sgpr_workgroup_id_x 1")
            a.raw(".end_amdhsa_kernel"); a.raw(".p2align 6")
    a.raw(f".amdhsa_kernel {KN}")
    a.raw("  .amdhsa_next_free_vgpr 256"); a.raw("  .amdhsa_next_free_sgpr 102"); a.raw("  .amdhsa_accum_offset 256")
    a.raw("  .amdhsa_group_segment_fixed_size 0"); a.raw("  .amdhsa_kernarg_size 112"); a.raw("  .amdhsa_user_sgpr_count 2")
    a.raw("  .amdhsa_user_sgpr_kernarg_segment_ptr 1"); a.raw("  .amdhsa_system_sgpr_workgroup_id_x 1")
    a.raw("  .amdhsa_float_denorm_mode_32 3")
    a.raw(".end_amdhsa_kernel")
    open(o.o, "w").write(a.text())
main()
```

```python
import re
TRANS = ("v_exp_f32", "v_log_f32", "v_rcp_f32", "v_rsq_f32", "v_sqrt_f32", "v_sin_f32", "v_cos_f32")
def regs_of(tok):
    tok = tok.strip()
    tok = tok.lstrip("-")
    m = re.fullmatch(r"abs\((.*)\)", tok)
    if m: tok = m.group(1)
    m = re.fullmatch(r"([vsa])(\d+)", tok)
    if m: return [(m.group(1), int(m.group(2)))]
    m = re.fullmatch(r"([vsa])\[(\d+):(\d+)\]", tok)
    if m: return [(m.group(1), i) for i in range(int(m.group(2)), int(m.group(3)) + 1)]
    if tok == "vcc": return [("s", 106), ("s", 107)]
    if tok == "exec": return [("s", 126), ("s", 127)]
    if tok == "m0": return [("s", 124)]
    return []
class Asm:
    def __init__(self):
        self.lines = []
        self.hist = []
        self.vm = []
        self.lg = []
        self.smem = False
    def raw(self, s): self.lines.append(s)
    def comment(self, s): self.lines.append("  ; " + s)
    def label(self, name, nop=True):
        self.lines.append(name + ":")
        if nop: self.barrier_hist()
        else: self.hist = []
    def barrier_hist(self):
        self.lines.append("  s_nop 4")
        self.hist = []
    def _classify(self, op, ops):
        dst, src = [], []
        kind = "other"
        R = [regs_of(o.split()[0]) if o.strip() else [] for o in ops]
        if op.startswith("v_"):
            kind = "valu"
            if op.startswith("v_permlane") and "swap" in op:
                dst = R[0] + R[1]; src = R[0] + R[1]
            elif op.startswith("v_cmp"):
                dst = R[0]; src = sum(R[1:], [])
            elif op.startswith(("v_add_co", "v_sub_co", "v_addc_co")):
                dst = R[0] + R[1]; src = sum(R[2:], [])
            else:
                dst = R[0]; src = sum(R[1:], [])
                if op.startswith(("v_fmac", "v_dot2c", "v_writelane")) or "_dpp" in op: src = src + R[0]
        elif op.startswith("s_"):
            kind = "salu"
            if op.startswith(("s_load", "s_buffer_load")): kind = "smem"
            if op.startswith(("s_cmp", "s_cbranch", "s_branch", "s_waitcnt", "s_nop", "s_barrier", "s_endpgm", "s_sleep", "s_setprio")):
                src = sum(R, [])
            else:
                dst = R[0] if R else []; src = sum(R[1:], [])
        elif op.startswith(("buffer_", "global_")):
            kind = "vmem"
            if "load" in op and not any("lds" == o.strip().split()[-1] for o in ops[-1:]):
                dst = R[0]; src = sum(R[1:], [])
            else:
                src = sum(R, [])
        elif op.startswith("ds_"):
            kind = "ds"
            if op.startswith(("ds_read", "ds_bpermute", "ds_swizzle", "ds_permute")) or "_rtn" in op:
                dst = R[0]; src = sum(R[1:], [])
            else:
                src = sum(R, [])
        return kind, dst, src
    def _need(self, op, kind, dst, src, text):
        need = 0
        dist = 0
        isdpp = "_dpp" in op or " row_" in text or "quad_perm" in text
        for h in reversed(self.hist):
            if dist >= 8: break
            hd = set(h["dst"])
            def req(n):
                nonlocal need
                need = max(need, n - dist)
            if h["kind"] == "valu":
                vd = {r for r in hd if r[0] == "v"}
                sd = {r for r in hd if r[0] == "s"}
                if kind == "valu":
                    if isdpp and vd & set(src): req(2)
                    if op.startswith("v_permlane") and vd & set(src): req(2)
                    if op.startswith(("v_readlane", "v_readfirstlane")) and vd & set(src): req(1)
                    if h["op"].startswith(TRANS) and not op.startswith(TRANS) and vd & (set(src) | set(dst)): req(1)
                    if h["op"].startswith(TRANS) and vd & set(src): req(1)
                    if sd & set(src): req(4 if op.startswith(("v_readlane", "v_writelane")) else 2)
                    if h["op"].startswith("v_dot"):
                        if vd & (set(src) | set(dst)):
                            same = h["op"] == op
                            if same:
                                ab = set(h.get("_", []))
                                srcab = set(self._cur_ab)
                                if vd & srcab: req(3)
                            else: req(3)
                    if "_sdwa" in h["op"] or "op_sel" in h["text"] and not h["op"].startswith(("v_dot", "v_pk")):
                        if vd & set(src): req(1)
                if kind in ("vmem", "ds"):
                    if sd & set(src): req(5)
                    if h["op"].startswith("v_dot") and vd & (set(src) | set(dst)): req(3)
                    if h["op"].startswith(TRANS) and vd & set(src): req(1)
                if kind in ("salu", "smem") and sd & set(src): req(1)
            if h["kind"] == "vmem" and "store" in h["op"] and ("x4" in h["op"] or "x3" in h["op"]):
                if set(h["data"]) & set(dst): req(2)
            if h["kind"] == "salu" and ("s", 124) in hd and kind == "vmem" and text.rstrip().endswith("lds"): req(1)
            dist += h["slots"]
        return need
    def I(self, text, tag=None):
        text = text.strip()
        m = re.match(r"(\S+)\s*(.*)", text)
        op, rest = m.group(1), m.group(2)
        ops = [o for o in re.split(r",\s*(?![^\[]*\])", rest)] if rest else []
        kind, dst, src = self._classify(op, ops)
        self._cur_ab = []
        if op.startswith("v_dot"):
            R = [regs_of(o.split()[0]) for o in ops]
            self._cur_ab = R[1] + R[2]
        n = self._need(op, kind, dst, src, text)
        if n > 0:
            self.lines.append(f"  s_nop {n-1}")
            self.hist.append(dict(op="s_nop", kind="salu", dst=[], src=[], slots=n, text=""))
        self.lines.append("  " + text)
        slots = 1
        if op == "s_nop": slots = int(ops[0]) + 1
        h = dict(op=op, kind=kind, dst=dst, src=src, slots=slots, text=text)
        if kind == "vmem" and "store" in op:
            h["data"] = regs_of(ops[0]) if op.startswith("buffer") else regs_of(ops[1])
        self.hist.append(h)
        self.hist = self.hist[-12:]
        if kind == "vmem": self.vm.append(tag)
        if kind == "ds": self.lg.append(tag)
        if kind == "smem": self.smem = True
        assert len(self.vm) <= 63, "vmcnt overflow"
    def wait_vm(self, tag=None):
        if tag is None:
            if self.vm: self.I("s_waitcnt vmcnt(0)")
            self.vm = []
            return
        if tag not in self.vm: return
        idx = len(self.vm) - 1 - self.vm[::-1].index(tag)
        n = len(self.vm) - 1 - idx
        self.I(f"s_waitcnt vmcnt({n})")
        self.vm = self.vm[idx + 1:]
    def wait_lg(self, tag=None):
        if tag is None or self.smem:
            self.I("s_waitcnt lgkmcnt(0)")
            self.lg = []; self.smem = False
            return
        if tag not in self.lg: return
        idx = len(self.lg) - 1 - self.lg[::-1].index(tag)
        n = len(self.lg) - 1 - idx
        assert n <= 15
        self.I(f"s_waitcnt lgkmcnt({n})")
        self.lg = self.lg[idx + 1:]
    def text(self): return "\n".join(self.lines) + "\n"
```

```python
import sys, argparse, struct
from asmlib import Asm
KN = "gated_mix__mha_block_cached__dense_activation_squared_relu__decode_kernel"
HDR = open("gated_mix__mha_block_cached__dense_activation_squared_relu__decode.s.ref").read().split("; Override launch")[0]
def f2u(f): return struct.unpack("<I", struct.pack("<f", f))[0]
QS = 0
MX = 512
LW = 544
PS = 1024
RP = 4096
OA = 4096
OP = 12288
LDS_BYTES = 20480
WS_EP = 0
WS_ML = 0x8000
WS_Q = 0x10000
WS_H = 0x50000
WS_O = 0x90000
WS_P = 0x110000
WS_END = 0x180000
WS_TS = 0x400000
C_SCALE = 0.0625 * 1.4426950408889634
OOB = "0x80000000"

def srd(a, d, p, nbytes):
    a.I(f"s_mov_b32 s{d}, s{p}"); a.I(f"s_mov_b32 s{d+1}, s{p+1}")
    a.I(f"s_mov_b32 s{d+2}, {nbytes}"); a.I(f"s_mov_b32 s{d+3}, 0x20000")
def dpp(op, d, s0, s1, ctrl, rm="0xf", bm="0xf"):
    return f"{op}_dpp v{d}, v{s0}, v{s1} {ctrl} row_mask:{rm} bank_mask:{bm}"
def wave_reduce63(a, op, vs):
    if isinstance(vs, int): vs = [vs]
    for c, rm in (("quad_perm:[1,0,3,2]", "0xf"), ("quad_perm:[2,3,0,1]", "0xf"), ("row_half_mirror", "0xf"), ("row_mirror", "0xf"),
                  ("row_bcast:15", "0xa"), ("row_bcast:31", "0xc")):
        for v in vs: a.I(dpp(op, v, v, v, c, rm=rm))
X8 = ("quad_perm:[1,0,3,2]", "quad_perm:[2,3,0,1]", "row_half_mirror")

def gen(a, o):
    D = o.depth
    SPIN = 1 << o.spin
    kvf, wf = o.kvflags, o.wflags
    nst = [0]
    VTS = 255
    def stamp():
        if not o.ts: return
        a.I("s_memrealtime s[98:99]")
        a.I("s_waitcnt lgkmcnt(0)"); a.smem = False; a.lg = []
        a.I(f"v_writelane_b32 v{VTS}, s98, {nst[0]}")
        nst[0] += 1
    (sH, sB, sS, sI, sROW, sT, sU, sSO, sSELL, sSELH, sXCC, sBH, sCGW, sPR, sTASK, sCNT, sG, sOMG, sW, sRED) = range(76, 96)
    sM3, sM4 = 100, 96
    a.raw(f".globl {KN}"); a.raw(".p2align 8"); a.raw(f".type {KN},@function"); a.raw(f"{KN}:")
    a.I("s_cmp_ge_u32 s2, 256")
    a.I("s_cbranch_scc1 L_end")
    if o.ts: a.I("s_memrealtime s[96:97]")
    a.I("s_load_dwordx8 s[4:11], s[0:1], 0")
    a.I("s_load_dwordx8 s[12:19], s[0:1], 32")
    a.I("s_load_dwordx8 s[20:27], s[0:1], 64")
    a.I("s_load_dwordx4 s[28:31], s[0:1], 96")
    a.I("v_lshrrev_b32 v6, 6, v0")
    a.I("v_and_b32 v1, 63, v0")
    a.I("v_readfirstlane_b32 s3, v6")
    a.I(f"s_and_b32 s{sH}, s2, 7")
    a.I(f"s_lshl_b32 s{sH}, s{sH}, 1")
    a.I(f"s_bfe_u32 s{sT}, s2, 0x10003")
    a.I(f"s_add_u32 s{sH}, s{sH}, s{sT}")
    a.I(f"s_bfe_u32 s{sB}, s2, 0x10004")
    a.I(f"s_lshr_b32 s{sS}, s2, 5")
    a.I(f"s_lshl_b32 s{sBH}, s{sB}, 4")
    a.I(f"s_add_u32 s{sBH}, s{sBH}, s{sH}")
    a.I(f"s_lshl_b32 s{sROW}, s{sBH}, 3")
    a.I(f"s_add_u32 s{sROW}, s{sROW}, s{sS}")
    a.I(f"s_lshl_b32 s{sT}, s{sROW}, 18")
    a.I(f"s_mul_i32 s{sU}, s3, {o.gran}")
    a.I(f"s_add_u32 s{sT}, s{sT}, s{sU}")
    a.I("v_lshlrev_b32 v7, 4, v1")
    a.I(f"v_add_u32 v2, s{sT}, v7")
    a.I("s_mov_b32 s34, 0x4000000"); a.I("s_mov_b32 s35, 0x20000")
    a.I("s_waitcnt lgkmcnt(0)"); a.smem = False
    if o.ts: a.I(f"v_writelane_b32 v{VTS}, s96, 14")
    stamp()
    a.I("s_mov_b32 s32, s6"); a.I("s_mov_b32 s33, s7")
    NB0 = 64
    ACC = 236
    pool = list(range(NB0, ACC, 4))
    buf = {}
    hiwater = [0]
    def alloc(tag):
        r = pool.pop(0); buf[tag] = r; hiwater[0] = max(hiwater[0], len(buf)); return r
    def free(tag): pool.append(buf.pop(tag))
    last_so = [None]
    def set_so(v):
        if v == 0: return "0"
        if last_so[0] != v:
            a.I(f"s_mov_b32 s{sSO}, {v}"); last_so[0] = v
        return f"s{sSO}"
    def issue(tag):
        kind, i = tag
        r = alloc(tag)
        if kind in ("K", "V"):
            lpc = o.gran // 1024
            off = (i // lpc) * 8 * o.gran + (i % lpc) * 1024
            so = set_so(off & ~4095)
            sr = "s[32:35]" if kind == "K" else "s[36:39]"
            a.I(f"buffer_load_dwordx4 v[{r}:{r+3}], v2, {sr}, {so} offen offset:{off & 4095} {kvf}", tag)
        elif kind == "WQ":
            so = set_so(i * 8 * 8192)
            a.I(f"buffer_load_dwordx4 v[{r}:{r+3}], v3, s[40:43], {so} offen {o.pflags}", tag)
        elif kind == "W1":
            a.I(f"buffer_load_dwordx4 v[{r}:{r+3}], v20, s[48:51], 0 offen {o.pflags}", tag)
        elif kind == "WO":
            a.I(f"buffer_load_dwordx4 v[{r}:{r+3}], v4, s[44:47], 0 offen offset:{i*896} {wf}", tag)
        elif kind == "W2":
            a.I(f"buffer_load_dwordx4 v[{r}:{r+3}], v5, s[52:55], 0 offen {wf}", tag)
    stream = [("K", i) for i in range(32)] + [("V", i) for i in range(32)]
    tailw = [("W2", 0), ("WO", 0), ("WO", 1)]
    issued = set()
    nxt = [0]
    specials = []
    def special(): specials.append(nxt[0])
    def flush_tailw():
        while tailw:
            t = tailw.pop(0); issue(t); issued.add(t)
    def slot():
        n = nxt[0]
        if n >= len(stream): return False
        skip = any(p + D <= n < p + D + o.boost for p in specials)
        if n >= D and not skip: a.wait_vm(stream[n - D])
        issue(stream[n]); issued.add(stream[n]); nxt[0] += 1
        if o.wo_early >= 0 and n >= len(stream) - 1 - o.wo_early:
            k = len(tailw) if n == len(stream) - 1 else o.wps
            for _ in range(k):
                if tailw:
                    t = tailw.pop(0); issue(t); issued.add(t)
        return True
    def landed(tag): return tag not in a.vm and tag in issued
    for _ in range(min(D, 4)): slot()
    srd(a, 40, 10, 448 * 8192)
    srd(a, 48, 16, 448 * 3584)
    srd(a, 60, 4, 1792)
    sCG, sRG, sCG1, sRG1 = sG, sOMG, sW, sRED
    a.I(f"s_lshl_b32 s{sI}, s{sB}, 3")
    a.I(f"s_add_u32 s{sI}, s{sI}, s{sS}")
    a.I(f"s_and_b32 s{sCG}, s{sI}, 3")
    a.I(f"s_lshr_b32 s{sRG}, s{sI}, 2")
    a.I(f"s_and_b32 s{sRG1}, s2, 7")
    a.I(f"s_lshr_b32 s{sCG1}, s2, 3")
    a.I("v_lshrrev_b32 v23, 3, v1")
    a.I("v_and_b32 v25, 7, v1")
    a.I("v_lshlrev_b32 v24, 4, v25")
    a.I(f"s_mul_i32 s{sT}, s{sRG}, 112")
    a.I(f"s_lshl_b32 s{sU}, s3, 4")
    a.I(f"s_add_u32 s{sT}, s{sT}, s{sU}")
    a.I(f"v_add_u32 v21, s{sT}, v23")
    a.I(f"s_lshl_b32 s{sT}, s{sH}, 9")
    a.I(f"s_lshl_b32 s{sU}, s{sCG}, 7")
    a.I(f"s_add_u32 s{sT}, s{sT}, s{sU}")
    a.I("s_cmp_eq_u32 s3, 7")
    a.I(f"s_cselect_b32 s{sT}, {OOB}, s{sT}")
    a.I("v_lshl_add_u32 v3, v21, 13, v24")
    a.I(f"v_add_u32 v3, s{sT}, v3")
    if o.x & 1: a.I(f"v_mov_b32 v3, {OOB}")
    issue(("WQ", 0)); issue(("WQ", 1))
    a.I(f"s_mul_i32 s{sT}, s{sRG1}, 56")
    a.I(f"s_lshl_b32 s{sU}, s3, 3")
    a.I(f"s_add_u32 s{sT}, s{sT}, s{sU}")
    a.I(f"v_add_u32 v22, s{sT}, v23")
    a.I(f"s_lshl_b32 s{sT}, s{sCG1}, 7")
    a.I("s_cmp_eq_u32 s3, 7")
    a.I(f"s_cselect_b32 s{sT}, {OOB}, s{sT}")
    a.I("s_cmp_ge_u32 s2, 224")
    a.I(f"s_cselect_b32 s{sT}, {OOB}, s{sT}")
    a.I("v_mul_u32_u24 v20, 0xe00, v22")
    a.I(f"v_add3_u32 v20, v20, v24, s{sT}")
    if o.x & 2: a.I(f"v_mov_b32 v20, {OOB}")
    issue(("W1", 0))
    a.I("v_lshlrev_b32 v21, 1, v21")
    a.I("v_lshlrev_b32 v22, 1, v22")
    for r, va, off in ((36, 21, 0), (37, 21, 16), (38, 21, 896), (39, 21, 912), (40, 22, 0), (41, 22, 896)):
        a.I(f"buffer_load_ushort v{r}, v{va}, s[60:63], 0 offen offset:{off}", ("X", r))
    srd(a, 56, 30, WS_TS + 0x20000 if o.ts else WS_END)
    a.I("v_mov_b32 v21, 0")
    a.I(f"buffer_load_dword v32, v21, s[56:59], 0 offen offset:{WS_EP} sc1", "EP")
    srd(a, 36, 8, 64 << 20)
    srd(a, 44, 12, 4096 * 896)
    srd(a, 52, 20, 1792 * 896)
    srd(a, 64, 24, 896)
    srd(a, 68, 22, 896)
    srd(a, 72, 26, 1792)
    srd(a, 12, 18, 3584)
    a.I(f"s_cmp_ge_u32 s{sI}, 7")
    a.I(f"s_cselect_b32 s{sT}, 1, 0")
    a.I(f"s_lshl_b32 s{sPR}, s{sH}, 1")
    a.I(f"s_add_u32 s{sPR}, s{sPR}, s{sT}")
    a.I(f"s_mul_i32 s{sT}, s{sT}, 7")
    a.I(f"s_sub_u32 s{sCGW}, s{sI}, s{sT}")
    a.I(f"s_lshl_b32 s{sT}, s{sPR}, 3")
    a.I(f"s_add_u32 s{sT}, s{sT}, s3")
    a.I(f"s_mul_i32 s{sT}, s{sT}, {16*896}")
    a.I(f"s_lshl_b32 s{sU}, s{sCGW}, 7")
    a.I(f"s_add_u32 s{sT}, s{sT}, s{sU}")
    a.I(f"s_cmp_ge_u32 s{sI}, 14")
    a.I(f"s_cselect_b32 s{sT}, {OOB}, s{sT}")
    a.I("v_mul_u32_u24 v4, 0x700, v23")
    a.I(f"v_add3_u32 v4, v4, v24, s{sT}")
    a.I(f"s_mul_i32 s{sT}, s{sPR}, 56")
    a.I(f"s_lshl_b32 s{sCNT}, s3, 3")
    a.I(f"s_add_u32 s{sT}, s{sT}, s{sCNT}")
    a.I(f"v_add_u32 v22, s{sT}, v23")
    a.I(f"s_cmp_ge_u32 s{sI}, 14")
    a.I(f"s_cselect_b32 s{sU}, {OOB}, s{sU}")
    a.I("s_cmp_eq_u32 s3, 7")
    a.I(f"s_cselect_b32 s{sU}, {OOB}, s{sU}")
    a.I("v_mul_u32_u24 v5, 0x380, v22")
    a.I(f"v_add3_u32 v5, v5, v24, s{sU}")
    a.I(f"v_add_u32 v22, s{sT}, v25")
    a.I("v_lshlrev_b32 v26, 1, v22")
    a.I("buffer_load_ushort v35, v26, s[12:15], 0 offen", "B1")
    a.I(f"s_and_b32 s{sU}, s{sU}, {OOB}")
    a.I(f"s_add_u32 s{sU}, s{sU}, {WS_H}")
    a.I("v_lshrrev_b32 v26, 1, v22")
    a.I("v_mul_u32_u24 v63, 0x3800, v23")
    a.I("v_lshl_add_u32 v63, v26, 4, v63")
    a.I(f"v_add_u32 v63, s{sU}, v63")
    if o.x & 16: a.I(f"v_mov_b32 v63, {OOB}")
    if o.x & 4: a.I(f"v_mov_b32 v4, {OOB}")
    if o.x & 8: a.I(f"v_mov_b32 v5, {OOB}")
    a.I("v_lshrrev_b32 v6, 5, v1")
    a.I(f"s_mov_b32 s{sSELL}, 0x05040100")
    a.I(f"s_mov_b32 s{sSELH}, 0x07060302")
    a.I(f"s_mov_b32 s{sM3}, 0xcccccccc"); a.I(f"s_mov_b32 s{sM3+1}, 0xcccccccc")
    a.I(f"s_mov_b32 s{sM4}, 0xaaaaaaaa"); a.I(f"s_mov_b32 s{sM4+1}, 0xaaaaaaaa")
    a.I(f"s_and_b32 s{sT}, s{sI}, 1")
    a.I(f"s_lshl_b32 s{sU}, s{sH}, 1")
    a.I(f"s_add_u32 s{sT}, s{sT}, s{sU}")
    a.I(f"s_lshl_b32 s{sT}, s{sT}, 2")
    a.I(f"s_and_b32 s{sU}, s3, 3")
    a.I(f"s_add_u32 s{sTASK}, s{sT}, s{sU}")
    a.I("v_cmp_gt_u32 vcc, 56, v1")
    a.I(f"v_mov_b32 v26, {OOB}")
    a.I("v_cndmask_b32 v26, v26, v7, vcc")
    a.I(f"s_bfe_u32 s{sT}, s{sTASK}, 0x10003")
    a.I(f"s_mul_i32 s{sT}, s{sT}, 896")
    gx, gg = alloc("GX"), alloc("GG")
    a.I(f"buffer_load_dwordx4 v[{gx}:{gx+3}], v26, s[60:63], s{sT} offen", "GX")
    a.I(f"buffer_load_dwordx4 v[{gg}:{gg+3}], v26, s[64:67], 0 offen", "GG")
    a.I(f"s_lshr_b32 s{sU}, s{sTASK}, 4")
    a.I(f"s_lshl_b32 s{sU}, s{sU}, 7")
    a.I(f"s_and_b32 s{sCNT}, s{sTASK}, 7")
    a.I(f"s_lshl_b32 s{sCNT}, s{sCNT}, 4")
    a.I(f"s_add_u32 s{sU}, s{sU}, s{sCNT}")
    a.I("v_lshlrev_b32 v26, 1, v25")
    a.I(f"buffer_load_ushort v33, v26, s[68:71], s{sU} offen", "B2")
    a.I(f"s_add_u32 s{sT}, s{sT}, s{sU}")
    a.I("v_and_b32 v57, 0x39, v1")
    a.I("v_cmp_eq_u32 vcc, 0, v57")
    a.I(f"v_add_u32 v26, s{sT}, v26")
    a.I(f"v_mov_b32 v57, {OOB}")
    a.I("v_cndmask_b32 v57, v57, v26, vcc")
    a.I("v_lshrrev_b32 v12, 4, v1")
    a.I("v_bfe_u32 v13, v1, 3, 1")
    a.I("v_lshl_add_u32 v12, v13, 2, v12")
    a.I("v_lshl_add_u32 v11, v25, 3, v12")
    a.I(f"s_lshl_b32 s{sT}, s3, 8")
    a.I(f"v_lshl_add_u32 v34, v11, 2, s{sT}")
    a.I(f"s_lshl_b32 s{sT}, s3, 10")
    a.I(f"v_lshl_add_u32 v29, v11, 3, s{sT}")
    a.I(f"s_lshl_b32 s{sT}, s3, 2")
    a.I(f"v_mov_b32 v31, s{sT}")
    a.I(f"s_lshl_b32 s{sT}, s{sH}, 13")
    a.I(f"s_lshl_b32 s{sU}, s{sCG}, 9")
    a.I(f"s_add_u32 s{sT}, s{sT}, s{sU}")
    a.I(f"s_lshl_b32 s{sU}, s{sRG}, 11")
    a.I(f"s_add_u32 s{sT}, s{sT}, s{sU}")
    a.I(f"s_add_u32 s{sCG}, s{sT}, {WS_Q}")
    a.I(f"s_lshl_b32 s{sT}, s{sCG1}, 9")
    a.I(f"s_mul_i32 s{sU}, s{sRG1}, 14336")
    a.I(f"s_add_u32 s{sT}, s{sT}, s{sU}")
    a.I(f"s_add_u32 s{sT}, s{sT}, {WS_H}")
    a.I("s_cmp_ge_u32 s2, 224")
    a.I(f"s_cselect_b32 s{sT}, {OOB}, s{sT}")
    a.I("s_cmp_eq_u32 s3, 0")
    a.I(f"s_cselect_b32 s{sCG}, s{sCG}, s{sT}")
    a.I(f"s_mov_b32 s{sT}, 114688")
    a.I(f"s_cselect_b32 s{sT}, 0x20000, s{sT}")
    a.I("v_and_b32 v30, 31, v1")
    a.I("v_lshlrev_b32 v30, 4, v30")
    a.I(f"v_mul_lo_u32 v11, v6, s{sT}")
    a.I(f"v_add3_u32 v30, v30, v11, s{sCG}")
    if o.x & 128: a.I(f"v_mov_b32 v30, {OOB}")
    while nxt[0] < o.s_proj: slot()
    a.wait_vm("EP")
    a.I(f"v_readfirstlane_b32 s{sT}, v32")
    a.I(f"s_mul_i32 s{sT}, s{sT}, 0x9E3779B1")
    a.I(f"s_add_u32 s{sT}, s{sT}, 0x7F4A7C15")
    a.I(f"v_mov_b32 v32, s{sT}")
    for k in range(6): a.I(f"v_lshlrev_b32 v{42+k}, 16, v{36+k}")
    def tred8(b, dst):
        for e in range(4): a.I(f"v_permlane16_swap_b32 v{b+2*e}, v{b+1+2*e}")
        for e in range(4): a.I(f"v_add_f32 v{b+2*e}, v{b+2*e}, v{b+1+2*e}")
        a.I(f"v_permlane32_swap_b32 v{b}, v{b+2}"); a.I(f"v_permlane32_swap_b32 v{b+4}, v{b+6}")
        a.I(f"v_add_f32 v{b}, v{b}, v{b+2}"); a.I(f"v_add_f32 v{b+4}, v{b+4}, v{b+6}")
        a.I(dpp("v_add_f32", dst, b, b, "row_ror:8", bm="0x3"))
        a.I(dpp("v_add_f32", dst, b + 4, b + 4, "row_ror:8", bm="0xc"))
    def tred8x2(b0, d0, b1, d1):
        for b in (b0, b1):
            for e in range(4): a.I(f"v_permlane16_swap_b32 v{b+2*e}, v{b+1+2*e}")
        for b in (b0, b1):
            for e in range(4): a.I(f"v_add_f32 v{b+2*e}, v{b+2*e}, v{b+1+2*e}")
        for b in (b0, b1):
            a.I(f"v_permlane32_swap_b32 v{b}, v{b+2}"); a.I(f"v_permlane32_swap_b32 v{b+4}, v{b+6}")
        for b in (b0, b1):
            a.I(f"v_add_f32 v{b}, v{b}, v{b+2}"); a.I(f"v_add_f32 v{b+4}, v{b+4}, v{b+6}")
        for b, d in ((b0, d0), (b1, d1)): a.I(dpp("v_add_f32", d, b, b, "row_ror:8", bm="0x3"))
        for b, d in ((b0, d0), (b1, d1)): a.I(dpp("v_add_f32", d, b + 4, b + 4, "row_ror:8", bm="0xc"))
    def proj(srcs, st):
        for n, (tag, x) in enumerate(srcs):
            r = buf[tag]
            for e in range(4):
                a.I(f"v_dot2_f32_bf16 v{8+2*e}, v{r+e}, v{x}, {'0' if n == 0 else f'v{8+2*e}'}")
                a.I(f"v_dot2_f32_bf16 v{9+2*e}, v{r+e}, v{x+6}, {'0' if n == 0 else f'v{9+2*e}'}")
        tred8(8, 16 + st)
        a.I(f"ds_write_b32 v34, v{16+st} offset:{RP + st*2048}")
    proj([(("WQ", 0), 36), (("WQ", 1), 37)], 0)
    proj([(("WQ", 0), 38), (("WQ", 1), 39)], 1)
    slot()
    proj([(("W1", 0), 40)], 2)
    proj([(("W1", 0), 41)], 3)
    for t in (("WQ", 0), ("WQ", 1), ("W1", 0)): free(t)
    slot()
    a.I("v_lshrrev_b32 v20, 5, v0")
    a.I("v_and_b32 v21, 31, v0")
    a.I("v_lshlrev_b32 v21, 3, v21")
    a.I("v_lshl_add_u32 v21, v20, 11, v21")
    a.wait_lg()
    a.I("s_barrier")
    a.I("s_cmp_ge_u32 s3, 2")
    a.I("s_cbranch_scc1 L_pjdone")
    for w in range(8): a.I(f"ds_read_b64 v[{36+2*w}:{37+2*w}], v21 offset:{RP + w*256}", ("s8", w))
    for lv in (1, 2, 4):
        for w in range(0, 8, 2*lv):
            if lv == 1: a.wait_lg(("s8", w + 1))
            for k in range(2): a.I(f"v_add_f32 v{36+2*w+k}, v{36+2*w+k}, v{36+2*(w+lv)+k}")
    a.I("v_mov_b32 v38, v37"); a.I("v_mov_b32 v37, v32"); a.I("v_mov_b32 v39, v32")
    a.I("buffer_store_dwordx4 v[36:39], v30, s[56:59], 0 offen sc1"); a.vm.pop()
    a.label("L_pjdone"); special()
    slot()
    a.wait_vm("B2")
    for e in range(4):
        a.I(f"v_lshlrev_b32 v20, 16, v{gx+e}"); a.I(f"v_and_b32 v21, 0xffff0000, v{gx+e}")
        a.I(f"v_lshlrev_b32 v22, 16, v{gg+e}"); a.I(f"v_and_b32 v26, 0xffff0000, v{gg+e}")
        a.I("v_mul_f32 v20, v20, v22"); a.I("v_mul_f32 v21, v21, v26")
        a.I(f"v_cvt_pk_bf16_f32 v{8+e}, v20, v21")
    for e in range(4):
        a.I(f"v_lshlrev_b32 v20, 16, v{8+e}"); a.I(f"v_and_b32 v21, 0xffff0000, v{8+e}")
        a.I(f"v_add_f32 v{8+e}, v20, v21")
    a.I("v_add_f32 v8, v8, v9"); a.I("v_add_f32 v10, v10, v11"); a.I("v_add_f32 v8, v8, v10")
    free("GX"); free("GG")
    slot()
    wave_reduce63(a, "v_add_f32", 8)
    a.I("v_cvt_pk_bf16_f32 v8, v8, v8")
    a.I("v_and_b32 v8, 0xffff0000, v8")
    a.I(f"v_mul_f32 v8, {hex(f2u(-1.4426950408889634))}, v8")
    a.I("v_exp_f32 v8, v8")
    a.I("v_add_f32 v8, 1.0, v8")
    a.I("v_rcp_f32 v8, v8")
    a.I("v_cvt_pk_bf16_f32 v8, v8, v8")
    a.I("v_and_b32 v8, 0xffff0000, v8")
    a.I("v_sub_f32 v9, 1.0, v8")
    a.I("v_cvt_pk_bf16_f32 v9, v9, v9")
    a.I("v_and_b32 v9, 0xffff0000, v9")
    a.I(f"v_readlane_b32 s{sG}, v8, 63")
    a.I(f"v_readlane_b32 s{sOMG}, v9, 63")
    a.I(f"s_cmp_ge_u32 s{sI}, 14")
    a.I(f"s_cselect_b32 s{sRED}, 1, 0")
    a.I("s_cmp_ge_u32 s3, 4")
    a.I(f"s_cselect_b32 s{sRED}, 0, s{sRED}")
    a.I(f"s_cmp_ge_u32 s{sTASK}, 112")
    a.I(f"s_cselect_b32 s{sRED}, 0, s{sRED}")
    a.I("v_and_b32 v10, 16, v1")
    a.I("v_cmp_ne_u32 vcc, 0, v10")
    a.I("v_lshlrev_b32 v33, 16, v33")
    a.I(f"v_mov_b32 v56, s{sG}")
    a.I(f"v_mov_b32 v8, s{sOMG}")
    a.I("v_cndmask_b32 v33, 0, v33, vcc")
    a.I("v_cndmask_b32 v56, v56, v8, vcc")
    stamp()
    def poll_check(name, regs, mask, reissue, sleep=2):
        if o.x & {"h": 16, "ml": 32, "q": 64}[name]:
            a.label(f"L_{name}ok"); return
        a.I(f"s_mov_b32 s{sCNT}, {SPIN}")
        a.label(f"L_{name}chk")
        a.I(f"v_cmp_ne_u32 vcc, v{regs[0]}, v32")
        for r in regs[1:]:
            a.I(f"v_cmp_ne_u32 s[98:99], v{r}, v32")
            a.I("s_or_b64 vcc, vcc, s[98:99]")
        if mask == "lo":
            a.I("s_cmp_lg_u32 vcc_lo, 0")
        else:
            a.I("s_cmp_lg_u64 vcc, 0")
        a.I(f"s_cbranch_scc0 L_{name}ok")
        a.I(f"s_sub_u32 s{sCNT}, s{sCNT}, 1")
        a.I(f"s_cbranch_scc1 L_{name}ok")
        if sleep: a.I(f"s_sleep {sleep}")
        n0 = len(a.vm)
        reissue()
        a.vm = a.vm[:n0]
        a.I("s_waitcnt vmcnt(0)")
        a.I(f"s_branch L_{name}chk")
        a.label(f"L_{name}ok")
    while nxt[0] < o.s_poll: slot()
    a.I(f"s_lshl_b32 s{sW}, s{sBH}, 13")
    a.I(f"s_add_u32 s{sW}, s{sW}, {WS_Q}")
    a.I("v_lshrrev_b32 v22, 4, v1")
    a.I("v_lshlrev_b32 v22, 11, v22")
    a.I("v_and_b32 v21, 15, v1")
    a.I("v_lshl_add_u32 v21, v21, 2, v31")
    a.I("v_mul_u32_u24 v20, 15, v31")
    a.I("v_add_u32 v21, v21, v20")
    a.I("v_lshl_add_u32 v22, v21, 2, v22")
    qp = lambda tag=None: a.I(f"buffer_load_dwordx4 v[8:11], v22, s[56:59], s{sW} offen sc1", tag)
    if o.x & 64: a.I(f"v_mov_b32 v22, {OOB}")
    qp("QP"); special()
    for _ in range(D + o.boost): slot()
    a.wait_vm("QP")
    poll_check("q", [9, 11], -1, qp)
    def red45_pk(x, y, ror=False):
        a.I(f"v_permlane16_swap_b32 v{x}, v{y}")
        a.I(f"v_add_f32 v{x}, v{x}, v{y}")
        if ror: a.I(dpp("v_add_f32", x, x, x, "row_ror:8"))
        a.I(f"v_mov_b32 v{y}, v{x}")
        a.I(f"v_permlane32_swap_b32 v{x}, v{y}")
        a.I(f"v_add_f32 v{x}, v{x}, v{y}")
        a.I(f"v_mov_b32 v{y}, v{x}")
        a.I(f"v_permlane16_swap_b32 v{x}, v{y}")
        a.I(f"v_cvt_pk_bf16_f32 v{x}, v{x}, v{y}")
    red45_pk(8, 10)
    a.I(f"ds_write_b32 v21, v8 offset:{QS}")
    slot()
    a.wait_lg()
    a.I("s_barrier")
    stamp()
    a.I("v_and_b32 v24, 31, v1")
    a.I("v_lshlrev_b32 v24, 4, v24")
    a.I(f"ds_read_b128 v[16:19], v24 offset:{QS}", "q")
    a.I("v_lshlrev_b32 v28, 1, v24")
    a.I("v_lshl_add_u32 v28, v6, 4, v28")
    a.I(f"s_lshl_b32 s{sT}, s3, 10")
    a.I(f"v_add_u32 v28, s{sT}, v28")
    slot()
    a.wait_lg()
    lvl = {}
    tfree = [20, 21, 22, 23, 26, 27, 8, 9, 10, 11, 12, 13]
    def merge(level, A, B):
        if level == 0:
            a.I(f"v_permlane16_swap_b32 v{A}, v{B}")
            a.I(f"v_add_f32 v{A}, v{A}, v{B}")
            tfree.append(B); return A
        if level in (1, 2):
            R = tfree.pop(0)
            if level == 1:
                a.I(dpp("v_add_f32", R, A, A, "row_ror:8", bm="0x3"))
                a.I(dpp("v_add_f32", R, B, B, "row_ror:8", bm="0xc"))
            else:
                a.I(dpp("v_add_f32", R, A, A, "row_shl:4", bm="0x5"))
                a.I(dpp("v_add_f32", R, B, B, "row_shr:4", bm="0xa"))
            tfree.extend([A, B]); return R
        q = "quad_perm:[2,3,0,1]" if level == 3 else "quad_perm:[1,0,3,2]"
        m = f"s[{sM3}:{sM3+1}]" if level == 3 else f"s[{sM4}:{sM4+1}]"
        a.I(dpp("v_add_f32", A, A, A, q))
        a.I(dpp("v_add_f32", B, B, B, q))
        a.I(f"v_cndmask_b32 v{A}, v{A}, v{B}, {m}")
        tfree.append(B); return A
    def kcons(i):
        a.wait_vm(("K", i))
        r = buf[("K", i)]
        t = tfree.pop(0)
        a.I(f"v_dot2_f32_bf16 v{t}, v{r}, v16, 0")
        for e in range(1, 4): a.I(f"v_dot2_f32_bf16 v{t}, v{r+e}, v{16+e}, v{t}")
        free(("K", i))
        L = 0
        while L in lvl:
            t = merge(L, lvl.pop(L), t); L += 1
        lvl[L] = t
    kd = 0
    while kd < 32:
        c = 0
        while kd < 32 and c < o.kps and landed(("K", kd)):
            kcons(kd); kd += 1; c += 1
        if kd < 32: slot()
    vS = lvl[5]
    a.I(f"v_cvt_pk_bf16_f32 v{vS}, v{vS}, v{vS}")
    a.I(f"v_and_b32 v30, 0xffff0000, v{vS}")
    a.I("v_mov_b32 v20, v30")
    wave_reduce63(a, "v_max_f32", 20)
    a.I(f"v_readlane_b32 s{sT}, v20, 63")
    a.I(f"v_mov_b32 v20, s{sT}")
    a.I(f"ds_write_b32 v31, v20 offset:{MX}")
    slot()
    a.wait_lg()
    stamp()
    a.I("s_barrier")
    a.I("v_mov_b32 v21, 0")
    a.I(f"ds_read_b128 v[8:11], v21 offset:{MX}")
    a.I(f"ds_read_b128 v[12:15], v21 offset:{MX+16}")
    a.I("v_bfrev_b32 v22, v1")
    a.I("v_bfe_u32 v22, v22, 27, 5")
    a.I("v_lshlrev_b32 v22, 2, v22")
    a.I(f"s_lshl_b32 s{sT}, s3, 8")
    a.I(f"v_lshl_add_u32 v23, v6, 7, s{sT}")
    a.I("v_add_u32 v22, v22, v23")
    a.wait_lg()
    a.I("v_max3_f32 v8, v8, v9, v10"); a.I("v_max3_f32 v12, v12, v13, v14"); a.I("v_max3_f32 v8, v8, v11, v15")
    a.I("v_max_f32 v34, v8, v12")
    a.I("v_sub_f32 v20, v30, v34")
    a.I(f"v_mul_f32 v20, {hex(f2u(C_SCALE))}, v20")
    a.I("v_exp_f32 v20, v20")
    a.I(f"ds_write_b32 v22, v20 offset:{PS}")
    a.I("v_mov_b32 v21, v20")
    wave_reduce63(a, "v_add_f32", 21)
    a.I(f"v_readlane_b32 s{sT}, v21, 63")
    a.I(f"v_mov_b32 v21, s{sT}")
    a.I(f"ds_write_b32 v31, v21 offset:{LW}")
    slot()
    a.wait_lg()
    a.I("s_barrier")
    a.I("v_mov_b32 v21, 0")
    a.I(f"ds_read_b128 v[40:43], v21 offset:{LW}", "l0")
    a.I(f"ds_read_b128 v[44:47], v21 offset:{LW+16}", "l1")
    PB = [16, 24]
    a.I(f"ds_read_b128 v[16:19], v23 offset:{PS}", ("p", 0))
    a.I("v_and_b32 v22, 0x1fe, v0")
    a.I("v_cmp_eq_u32 vcc, 0x140, v22")
    a.I(f"v_mov_b32 v22, {OOB}")
    a.I("v_cndmask_b32 v22, v22, v7, vcc")
    a.I(f"s_getreg_b32 s{sXCC}, hwreg(HW_REG_XCC_ID)")
    a.I(f"s_and_b32 s{sXCC}, s{sXCC}, 15")
    if o.fakex: a.I(f"s_lshr_b32 s{sXCC}, s2, 5")
    a.I(f"v_mov_b32 v20, s{sXCC}")
    a.I(f"s_lshl_b32 s{sT}, s{sROW}, 7")
    a.I(f"s_add_u32 s{sT}, s{sT}, {WS_ML}")
    a.wait_lg("l1")
    a.I("v_add_f32 v40, v40, v41"); a.I("v_add_f32 v42, v42, v43"); a.I("v_add_f32 v44, v44, v45"); a.I("v_add_f32 v46, v46, v47")
    a.I("v_add_f32 v40, v40, v42"); a.I("v_add_f32 v44, v44, v46"); a.I("v_add_f32 v42, v40, v44")
    a.I(f"v_cndmask_b32 v40, v34, v20, s[{sM4}:{sM4+1}]"); a.I("v_mov_b32 v41, v32"); a.I("v_mov_b32 v43, v32")
    if o.x & 256: a.I(f"v_mov_b32 v22, {OOB}")
    a.I(f"buffer_store_dwordx4 v[40:43], v22, s[56:59], s{sT} offen sc1", "MLST"); special()
    def vcons(i):
        if i % 4 == 0:
            c = i // 4
            if c + 1 < 8:
                nb = PB[(c + 1) & 1]
                a.I(f"ds_read_b128 v[{nb}:{nb+3}], v23 offset:{PS + (c+1)*16}", ("p", c + 1))
            a.wait_lg(("p", c))
        a.wait_vm(("V", i))
        r = buf[("V", i)]
        p = PB[(i // 4) & 1] + (i % 4)
        for e in range(4):
            a.I(f"v_lshlrev_b32 v20, 16, v{r+e}")
            a.I(f"v_and_b32 v21, 0xffff0000, v{r+e}")
            op = "v_mul_f32" if i == 0 else "v_fmac_f32"
            a.I(f"{op} v{8+2*e}, v20, v{p}")
            a.I(f"{op} v{9+2*e}, v21, v{p}")
        free(("V", i))
    vd = 0
    mlstate = 0
    def ml_issue(tag=None):
        a.I(f"buffer_load_dwordx4 v[36:39], v22, s[56:59], s{sW} offen sc1", tag)
    hstate = [0]
    def hp(tag=None):
        a.I("buffer_load_dwordx4 v[44:47], v63, s[56:59], 0 offen sc1")
        a.I(f"buffer_load_dwordx4 v[48:51], v63, s[56:59], s{sW} offen sc1", tag)
    def hstep():
        if hstate[0] == 0 and nxt[0] >= o.s_h:
            a.I(f"s_mov_b32 s{sW}, 114688")
            hp("HP"); hstate[0] = 1; special()
        elif hstate[0] == 1 and "HP" not in a.vm:
            a.I(f"s_cmp_ge_u32 s{sI}, 14")
            a.I("s_cbranch_scc1 L_hok")
            a.I("s_cmp_eq_u32 s3, 7")
            a.I("s_cbranch_scc1 L_hok")
            poll_check("h", [45, 47, 49, 51], -1, hp)
            a.I("v_lshlrev_b32 v35, 16, v35")
            a.I(f"v_cndmask_b32 v20, v44, v46, s[{sM4}:{sM4+1}]")
            a.I(f"v_cndmask_b32 v48, v48, v50, s[{sM4}:{sM4+1}]")
            red45_pk(20, 48, ror=True)
            a.I("v_lshlrev_b32 v21, 16, v20"); a.I("v_and_b32 v22, 0xffff0000, v20")
            a.I("v_add_f32 v21, v35, v21"); a.I("v_add_f32 v22, v35, v22")
            a.I("v_cvt_pk_bf16_f32 v20, v21, v22")
            a.I("v_lshlrev_b32 v21, 16, v20"); a.I("v_and_b32 v22, 0xffff0000, v20")
            a.I("v_max_f32 v21, 0, v21"); a.I("v_max_f32 v22, 0, v22")
            a.I("v_mul_f32 v21, v21, v21"); a.I("v_mul_f32 v22, v22, v22")
            a.I("v_cvt_pk_bf16_f32 v44, v21, v22")
            a.I("v_lshrrev_b32 v45, 3, v1")
            a.I("v_lshlrev_b32 v45, 2, v45")
            a.I("ds_bpermute_b32 v35, v45, v44", "hb")
            hstate[0] = 2
    wp = []
    def wprep():
        a.wait_lg("hb")
        a.wait_vm(("WO", 1))
        r = buf[("W2", 0)]
        a.I("v_and_b32 v44, 0xffff, v35"); a.I("v_lshlrev_b32 v45, 16, v35")
        a.I("v_lshrrev_b32 v46, 16, v35"); a.I("v_and_b32 v47, 0xffff0000, v35")
        for b in range(2):
            for e in range(4):
                a.I(f"v_dot2_f32_bf16 v{ACC+8*b+2*e}, v{r+e}, v{44+2*b}, 0")
                a.I(f"v_dot2_f32_bf16 v{ACC+8*b+2*e+1}, v{r+e}, v{45+2*b}, 0")
        A = [buf[("WO", 0)] + e for e in range(4)]; B = [buf[("WO", 1)] + e for e in range(4)]
        spare = [30]
        for e in range(4):
            t = spare.pop(0)
            a.I(f"v_perm_b32 v{t}, v{B[e]}, v{A[e]}, s{sSELL}")
            a.I(f"v_perm_b32 v{B[e]}, v{B[e]}, v{A[e]}, s{sSELH}")
            spare.append(A[e]); wp.extend([t, B[e]])
        tred8x2(ACC, 49, ACC + 8, 51)
    while vd < 32:
        c = 0
        while vd < 32 and c < o.vps and (landed(("V", vd)) or nxt[0] >= len(stream)):
            vcons(vd); vd += 1; c += 1
            if o.wo_early < 0 and vd == 28 - o.wo_early: flush_tailw()
        hstep()
        if mlstate == 0 and nxt[0] >= o.s_ml and hstate[0] == 2:
            a.I("v_lshrrev_b32 v30, 4, v1")
            a.I(f"v_xor_b32 v30, s{sB}, v30")
            a.I("v_lshlrev_b32 v30, 14, v30")
            a.I("v_bfe_u32 v22, v1, 1, 3")
            a.I("v_lshl_add_u32 v30, v22, 7, v30")
            a.I("v_and_b32 v22, 1, v1")
            a.I("v_lshl_add_u32 v30, v22, 4, v30")
            a.I("v_cmp_gt_u32 vcc, 32, v1")
            a.I(f"v_mov_b32 v22, {OOB}")
            a.I("v_cndmask_b32 v22, v22, v30, vcc")
            a.I(f"s_lshl_b32 s{sW}, s{sH}, 10")
            a.I(f"s_add_u32 s{sW}, s{sW}, {WS_ML}")
            if o.x & 32: a.I(f"v_mov_b32 v22, {OOB}")
            ml_issue("MLP"); special()
            a.I(f"s_lshl_b32 s{sT}, s{sBH}, 14")
            a.I(f"s_lshl_b32 s{sU}, s{sS}, 4")
            a.I(f"s_add_u32 s{sT}, s{sT}, s{sU}")
            a.I("v_and_b32 v30, 3, v0")
            a.I("v_cmp_eq_u32 vcc, 0, v30")
            a.I(f"v_lshl_add_u32 v60, v0, 5, s{sT}")
            a.I(f"v_mov_b32 v61, {OOB}")
            a.I("v_cndmask_b32 v60, v61, v60, vcc")
            a.I("v_lshrrev_b32 v59, 2, v0")
            a.I("v_lshrrev_b32 v58, 3, v59")
            a.I("v_lshlrev_b32 v58, 12, v58")
            a.I("v_and_b32 v62, 7, v59")
            a.I("v_lshl_add_u32 v58, v62, 4, v58")
            a.I(f"s_lshl_b32 s{sT}, s{sCGW}, 16")
            a.I(f"s_lshl_b32 s{sU}, s{sPR}, 7")
            a.I(f"s_add_u32 s{sT}, s{sT}, s{sU}")
            a.I(f"v_add_u32 v58, s{sT}, v58")
            a.I("v_cndmask_b32 v58, v61, v58, vcc")
            a.I("v_lshlrev_b32 v59, 3, v59")
            a.I("v_lshl_add_u32 v59, v30, 11, v59")
            a.I(f"s_lshl_b32 s{sT}, s{sPR}, 13")
            a.I(f"s_lshl_b32 s{sU}, s3, 10")
            a.I(f"s_add_u32 s{sT}, s{sT}, s{sU}")
            a.I(f"s_cmp_ge_u32 s{sI}, 14")
            a.I(f"s_cselect_b32 s{sT}, {OOB}, s{sT}")
            a.I(f"v_add_u32 v61, s{sT}, v7")
            a.I(f"s_lshl_b32 s{sT}, s{sTASK}, 12")
            a.I(f"v_add_u32 v62, s{sT}, v7")
            if o.opre:
                so = set_so(WS_O)
                a.I(f"buffer_load_dwordx4 v[40:43], v61, s[56:59], {so} offen sc1")
                so = set_so(WS_O + 0x40000)
                a.I(f"buffer_load_dwordx4 v[40:43], v61, s[56:59], {so} offen sc1", "OPRE")
            mlstate = 1
        elif mlstate == 1 and "MLP" not in a.vm and "OPRE" not in a.vm:
            poll_check("ml", [37, 39], "lo", ml_issue)
            a.I(f"v_cmp_ne_u32 vcc, s{sXCC}, v36")
            a.I("v_mov_b32 v37, v36")
            a.I(f"s_and_b32 s{sXCC}, vcc_lo, {'0xaaaaaaaa' if not (o.x & 32) else 0}")
            for cc in ("quad_perm:[2,3,0,1]", "row_ror:4", "row_ror:8"):
                a.I(dpp("v_max_f32", 37, 37, 37, cc))
            a.I("v_sub_f32 v36, v36, v37")
            a.I("v_sub_f32 v39, v34, v37")
            a.I(f"v_mul_f32 v36, {hex(f2u(C_SCALE))}, v36")
            a.I(f"v_mul_f32 v39, {hex(f2u(C_SCALE))}, v39")
            a.I("v_exp_f32 v36, v36")
            a.I("v_exp_f32 v39, v39")
            a.I("v_mul_f32 v38, v38, v36")
            for cc in ("quad_perm:[2,3,0,1]", "row_ror:4", "row_ror:8"):
                a.I(dpp("v_add_f32", 38, 38, 38, cc))
            a.I("v_rcp_f32 v38, v38")
            a.I("v_mul_f32 v38, v38, v39")
            a.I(f"v_readfirstlane_b32 s{sW}, v38")
            mlstate = 2
        elif mlstate == 2 and not wp and landed(("WO", 1)):
            wprep()
        slot()
    assert mlstate == 2
    stamp()
    for k in range(4): a.I(f"v_permlane32_swap_b32 v{8+k}, v{12+k}")
    for k in range(4): a.I(f"v_add_f32 v{8+k}, v{8+k}, v{12+k}")
    a.I(f"ds_write_b128 v28, v[8:11] offset:{OA}")
    a.I(f"s_mov_b32 s{sT}, {WS_O}")
    a.I(f"s_mov_b32 s{sU}, {WS_O + 0x40000}")
    a.I(f"s_cmp_lg_u32 s{sXCC}, 0")
    a.wait_lg()
    a.I("s_barrier")
    def reduce8(base):
        a.I(f"ds_read_b64 v[36:37], v59 offset:{base}")
        a.I(f"ds_read_b64 v[40:41], v59 offset:{base+1024}")
        a.I("v_mov_b32 v39, v32")
        a.wait_lg()
        a.I("v_add_f32 v36, v36, v40"); a.I("v_add_f32 v38, v37, v41")
        a.I("v_mov_b32 v37, v32")
        for c in ("quad_perm:[1,0,3,2]", "quad_perm:[2,3,0,1]"):
            a.I(dpp("v_add_f32", 36, 36, 36, c)); a.I(dpp("v_add_f32", 38, 38, 38, c))
    reduce8(OA)
    a.I(f"v_mul_f32 v36, s{sW}, v36")
    a.I(f"v_mul_f32 v38, s{sW}, v38")
    a.I("s_cbranch_scc1 L_oslow")
    a.I(f"buffer_store_dwordx4 v[36:39], v60, s[56:59], s{sT} offen")
    a.I("s_branch L_ost")
    a.label("L_oslow", nop=False)
    a.I(f"buffer_store_dwordx4 v[36:39], v60, s[56:59], s{sT} offen sc1"); a.vm.pop()
    a.label("L_ost", nop=False)
    stamp()
    a.I(f"s_cmp_ge_u32 s{sI}, 14")
    a.I("s_cbranch_scc1 L_red")
    if not wp: wprep()
    a.I(f"s_mov_b32 s{sCNT}, {SPIN}")
    a.label("L_opoll", nop=False)
    a.I(f"buffer_load_dwordx4 v[16:19], v61, s[56:59], s{sT} offen sc1")
    a.I(f"buffer_load_dwordx4 v[20:23], v61, s[56:59], s{sU} offen sc1")
    a.I(f"s_sub_u32 s{sCNT}, s{sCNT}, 1")
    a.I("s_cbranch_scc1 L_ook")
    if o.osleep: a.I(f"s_sleep {o.osleep}")
    a.I("s_waitcnt vmcnt(0)")
    a.I("v_cmp_ne_u32 vcc, v17, v32")
    a.I("v_cmp_ne_u32 s[98:99], v19, v32")
    a.I("v_cmp_ne_u32 s[4:5], v21, v32")
    a.I("v_cmp_ne_u32 s[6:7], v23, v32")
    a.I("s_or_b64 vcc, vcc, s[98:99]")
    a.I("s_or_b64 s[4:5], s[4:5], s[6:7]")
    a.I("s_or_b64 vcc, vcc, s[4:5]")
    a.I("s_cbranch_scc1 L_opoll")
    a.label("L_ook", nop=False)
    a.vm = []
    stamp()
    for c in X8:
        for r in (16, 18, 20, 22): a.I(dpp("v_add_f32", r, r, r, c))
    a.I("v_cvt_pk_bf16_f32 v16, v16, v18")
    a.I("v_cvt_pk_bf16_f32 v20, v20, v22")
    for c in range(8): a.I(f"v_dot2_f32_bf16 v{ACC+c}, v{wp[c]}, v16, 0")
    for c in range(8): a.I(f"v_dot2_f32_bf16 v{ACC+8+c}, v{wp[c]}, v20, 0")
    tred8x2(ACC, 48, ACC + 8, 50)
    a.I(f"ds_write_b64 v29, v[48:49] offset:{OP}")
    a.I(f"ds_write_b64 v29, v[50:51] offset:{OP+512}")
    a.I(f"s_mov_b32 s{sT}, {WS_P}")
    a.wait_lg()
    a.I("s_barrier")
    reduce8(OP)
    a.I(f"buffer_store_dwordx4 v[36:39], v58, s[56:59], s{sT} offen sc1")
    stamp()
    a.I("s_branch L_fin")
    a.label("L_red", nop=False)
    if o.ts:
        nst[0] -= 2; stamp(); stamp()
    a.I(f"s_cmp_eq_u32 s{sRED}, 0")
    a.I("s_cbranch_scc1 L_fin")
    a.I(f"s_mov_b32 s{sT}, {WS_P}")
    a.I(f"s_mov_b32 s{sCNT}, {SPIN}")
    for j in range(4): a.I(f"s_mov_b64 s[{4+2*j}:{5+2*j}], -1")
    a.label("L_rpoll", nop=False)
    for j in range(4):
        a.I(f"s_mov_b64 exec, s[{4+2*j}:{5+2*j}]")
        a.I(f"s_cbranch_execz L_rp{j}")
        a.I(f"buffer_load_dwordx4 v[{8+4*j}:{11+4*j}], v62, s[56:59], s{sT} offen offset:{1024*j} sc1")
        a.label(f"L_rp{j}", nop=False)
    a.I("s_mov_b64 exec, -1")
    a.I("s_waitcnt vmcnt(0)"); a.vm = []
    for j in range(4):
        a.I(f"v_cmp_ne_u32 s[{4+2*j}:{5+2*j}], v{9+4*j}, v32")
        a.I(f"v_cmp_ne_u32 s[{16+2*j}:{17+2*j}], v{11+4*j}, v32")
    for j in range(4): a.I(f"s_or_b64 s[{4+2*j}:{5+2*j}], s[{4+2*j}:{5+2*j}], s[{16+2*j}:{17+2*j}]")
    a.I("s_or_b64 vcc, s[4:5], s[6:7]")
    a.I("s_or_b64 s[98:99], s[8:9], s[10:11]")
    a.I("s_or_b64 vcc, vcc, s[98:99]")
    a.I("s_cbranch_scc0 L_rok")
    if o.rsleep: a.I(f"s_sleep {o.rsleep}")
    a.I(f"s_sub_u32 s{sCNT}, s{sCNT}, 1")
    a.I("s_cbranch_scc0 L_rpoll")
    a.label("L_rok", nop=False)
    a.I("v_add_f32 v8, v8, v12"); a.I("v_add_f32 v10, v10, v14"); a.I("v_add_f32 v16, v16, v20"); a.I("v_add_f32 v18, v18, v22")
    a.I("v_add_f32 v8, v8, v16"); a.I("v_add_f32 v10, v10, v18")
    a.I("v_permlane16_swap_b32 v8, v10")
    a.I("v_add_f32 v8, v8, v10")
    a.I(dpp("v_add_f32", 8, 8, 8, "row_ror:8"))
    a.I("v_mov_b32 v9, v8")
    a.I("v_permlane32_swap_b32 v8, v9")
    a.I("v_add_f32 v8, v8, v9")
    a.I("v_cvt_pk_bf16_f32 v8, v8, v8")
    a.I("v_and_b32 v8, 0xffff0000, v8")
    a.I("v_add_f32 v8, v8, v33")
    a.I("v_cvt_pk_bf16_f32 v8, v8, v8")
    a.I("v_and_b32 v8, 0xffff0000, v8")
    a.I("v_mul_f32 v8, v8, v56")
    a.I("v_cvt_pk_bf16_f32 v8, v8, v8")
    a.I("v_and_b32 v8, 0xffff0000, v8")
    a.I("v_mov_b32 v9, v8")
    a.I("v_permlane16_swap_b32 v8, v9")
    a.I("v_add_f32 v8, v8, v9")
    a.I("v_mov_b32_dpp v9, v8 quad_perm:[1,0,3,2] row_mask:0xf bank_mask:0xf")
    a.I("v_cvt_pk_bf16_f32 v8, v8, v9")
    a.I("buffer_store_dword v8, v57, s[72:75], 0 offen")
    a.I(f"s_cmp_lg_u32 s{sTASK}, 0")
    a.I("s_cbranch_scc1 L_fin")
    a.I("v_mov_b32 v9, 0")
    a.I("s_mov_b64 exec, 1")
    a.I(f"buffer_store_dword v32, v9, s[56:59], 0 offen offset:{WS_EP} sc1")
    a.I("s_mov_b64 exec, -1")
    a.label("L_fin", nop=bool(o.ts))
    if o.ts:
        stamp()
        a.I("s_getreg_b32 s98, hwreg(HW_REG_XCC_ID)")
        a.I(f"v_writelane_b32 v{VTS}, s98, 15")
        a.I("v_cmp_gt_u32 vcc, 16, v1")
        a.I(f"v_mov_b32 v21, {OOB}")
        a.I("v_lshlrev_b32 v20, 2, v1")
        a.I("v_cndmask_b32 v20, v21, v20, vcc")
        a.I("s_lshl_b32 s98, s2, 3"); a.I("s_add_u32 s98, s98, s3"); a.I("s_lshl_b32 s98, s98, 6")
        a.I(f"s_add_u32 s98, s98, {WS_TS}")
        a.I(f"buffer_store_dword v{VTS}, v20, s[56:59], s98 offen")
    a.label("L_end", nop=False)
    a.I("s_endpgm")
    print("buffer high-water:", hiwater[0], file=sys.stderr)

def main():
    ap = argparse.ArgumentParser()
    ap.add_argument("-o", default="k.s")
    ap.add_argument("--kvflags", default="nt")
    ap.add_argument("--wflags", default="nt")
    ap.add_argument("--pflags", default="nt")
    ap.add_argument("--depth", type=int, default=4)
    ap.add_argument("--gran", type=int, default=4096)
    ap.add_argument("--s_proj", type=int, default=7)
    ap.add_argument("--s_poll", type=int, default=14)
    ap.add_argument("--s_ml", type=int, default=52)
    ap.add_argument("--s_h", type=int, default=42)
    ap.add_argument("--wo_early", type=int, default=8)
    ap.add_argument("--wps", type=int, default=1)
    ap.add_argument("--kps", type=int, default=3)
    ap.add_argument("--boost", type=int, default=0)
    ap.add_argument("--vps", type=int, default=2)
    ap.add_argument("--fakex", type=int, default=0)
    ap.add_argument("--opre", type=int, default=0)
    ap.add_argument("--osleep", type=int, default=0)
    ap.add_argument("--rsleep", type=int, default=2)
    ap.add_argument("--spin", type=int, default=17)
    ap.add_argument("--x", type=int, default=0)
    ap.add_argument("--ts", type=int, default=0)
    o = ap.parse_args()
    a = Asm()
    a.raw(HDR.rstrip("\n"))
    a.raw(f"; @launch grid=(256,1,1) block=(512,1,1) lds={LDS_BYTES}")
    a.raw('.amdgcn_target "amdgcn-amd-amdhsa--gfx950"')
    a.raw(".text")
    gen(a, o)
    a.raw('.section .rodata,"a"'); a.raw(".p2align 6")
    a.raw(f".amdhsa_kernel {KN}")
    a.raw("  .amdhsa_next_free_vgpr 256"); a.raw("  .amdhsa_next_free_sgpr 102"); a.raw("  .amdhsa_accum_offset 256")
    a.raw("  .amdhsa_group_segment_fixed_size 0"); a.raw("  .amdhsa_kernarg_size 112"); a.raw("  .amdhsa_user_sgpr_count 2")
    a.raw("  .amdhsa_user_sgpr_kernarg_segment_ptr 1"); a.raw("  .amdhsa_system_sgpr_workgroup_id_x 1")
    a.raw("  .amdhsa_float_denorm_mode_32 3")
    a.raw(".end_amdhsa_kernel")
    open(o.o, "w").write(a.text())
main()
```

```python
import sys, argparse, struct
from asmlib import Asm
KN = "gated_mix__mha_block_cached__dense_activation_squared_relu__decode_kernel"
HDR = open("gated_mix__mha_block_cached__dense_activation_squared_relu__decode.s.ref").read().split("; Override launch")[0]
def f2u(f): return struct.unpack("<I", struct.pack("<f", f))[0]
QS = 0
MX = 512
CN = 576
PS = 1024
RP = 4096
OA = 4096
OP = 12288
LDS_BYTES = 20480
WS_EP = 0
WS_ML = 0x8000
WS_Q = 0x10000
WS_H = 0x50000
WS_O = 0x90000
WS_P = 0x110000
WS_END = 0x180000
WS_TS = 0x400000
C_SCALE = 0.0625 * 1.4426950408889634
OOB = "0x80000000"

def srd(a, d, p, nbytes):
    a.I(f"s_mov_b32 s{d}, s{p}"); a.I(f"s_mov_b32 s{d+1}, s{p+1}")
    a.I(f"s_mov_b32 s{d+2}, {nbytes}"); a.I(f"s_mov_b32 s{d+3}, 0x20000")
def dpp(op, d, s0, s1, ctrl, rm="0xf", bm="0xf"):
    return f"{op}_dpp v{d}, v{s0}, v{s1} {ctrl} row_mask:{rm} bank_mask:{bm}"
def wave_reduce63(a, op, vs):
    if isinstance(vs, int): vs = [vs]
    for c, rm in (("quad_perm:[1,0,3,2]", "0xf"), ("quad_perm:[2,3,0,1]", "0xf"), ("row_half_mirror", "0xf"), ("row_mirror", "0xf"),
                  ("row_bcast:15", "0xa"), ("row_bcast:31", "0xc")):
        for v in vs: a.I(dpp(op, v, v, v, c, rm=rm))
X8 = ("quad_perm:[1,0,3,2]", "quad_perm:[2,3,0,1]", "row_half_mirror")

def gen(a, o):
    D = o.depth
    SPIN = 1 << o.spin
    kvf, wf = o.kvflags, o.wflags
    nst = [0]
    VTS = 255
    def stamp():
        if not o.ts: return
        a.I("s_memrealtime s[98:99]")
        a.I("s_waitcnt lgkmcnt(0)"); a.smem = False; a.lg = []
        a.I(f"v_writelane_b32 v{VTS}, s98, {nst[0]}")
        nst[0] += 1
    (sH, sB, sS, sI, sROW, sT, sU, sSO, sSELL, sSELH, sXCC, sBH, sCGW, sPR, sTASK, sCNT, sG, sOMG, sW, sRED) = range(76, 96)
    sM3, sM4 = 100, 96
    a.raw(f".globl {KN}"); a.raw(".p2align 8"); a.raw(f".type {KN},@function"); a.raw(f"{KN}:")
    a.I("s_cmp_ge_u32 s2, 256")
    a.I("s_cbranch_scc1 L_end")
    if o.ts: a.I("s_memrealtime s[96:97]")
    a.I("s_load_dwordx8 s[4:11], s[0:1], 0")
    a.I("s_load_dwordx8 s[12:19], s[0:1], 32")
    a.I("s_load_dwordx8 s[20:27], s[0:1], 64")
    a.I("s_load_dwordx4 s[28:31], s[0:1], 96")
    a.I("v_lshrrev_b32 v6, 6, v0")
    a.I("v_and_b32 v1, 63, v0")
    a.I("v_readfirstlane_b32 s3, v6")
    a.I(f"s_and_b32 s{sH}, s2, 7")
    a.I(f"s_lshl_b32 s{sH}, s{sH}, 1")
    a.I(f"s_bfe_u32 s{sT}, s2, 0x10003")
    a.I(f"s_add_u32 s{sH}, s{sH}, s{sT}")
    a.I(f"s_bfe_u32 s{sB}, s2, 0x10004")
    a.I(f"s_lshr_b32 s{sS}, s2, 5")
    a.I(f"s_lshl_b32 s{sBH}, s{sB}, 4")
    a.I(f"s_add_u32 s{sBH}, s{sBH}, s{sH}")
    a.I(f"s_lshl_b32 s{sROW}, s{sBH}, 3")
    a.I(f"s_add_u32 s{sROW}, s{sROW}, s{sS}")
    a.I(f"s_lshl_b32 s{sT}, s{sROW}, 18")
    a.I(f"s_mul_i32 s{sU}, s3, {o.gran}")
    a.I(f"s_add_u32 s{sT}, s{sT}, s{sU}")
    a.I("v_lshlrev_b32 v7, 4, v1")
    a.I(f"v_add_u32 v2, s{sT}, v7")
    a.I("s_mov_b32 s34, 0x4000000"); a.I("s_mov_b32 s35, 0x20000")
    a.I("s_waitcnt lgkmcnt(0)"); a.smem = False
    if o.ts: a.I(f"v_writelane_b32 v{VTS}, s96, 14")
    stamp()
    a.I("s_mov_b32 s32, s6"); a.I("s_mov_b32 s33, s7")
    NB0 = 64
    ACC = 236
    pool = list(range(NB0, ACC, 4))
    buf = {}
    hiwater = [0]
    def alloc(tag):
        r = pool.pop(0); buf[tag] = r; hiwater[0] = max(hiwater[0], len(buf)); return r
    def free(tag): pool.append(buf.pop(tag))
    last_so = [None]
    def set_so(v):
        if v == 0: return "0"
        if last_so[0] != v:
            a.I(f"s_mov_b32 s{sSO}, {v}"); last_so[0] = v
        return f"s{sSO}"
    def issue(tag):
        kind, i = tag
        r = alloc(tag)
        if kind in ("K", "V"):
            lpc = o.gran // 1024
            off = (i // lpc) * 8 * o.gran + (i % lpc) * 1024
            so = set_so(off & ~4095)
            sr = "s[32:35]" if kind == "K" else "s[36:39]"
            a.I(f"buffer_load_dwordx4 v[{r}:{r+3}], v2, {sr}, {so} offen offset:{off & 4095} {kvf}", tag)
        elif kind == "WQ":
            so = set_so(i * 8 * 8192)
            a.I(f"buffer_load_dwordx4 v[{r}:{r+3}], v3, s[40:43], {so} offen {o.pflags}", tag)
        elif kind == "W1":
            a.I(f"buffer_load_dwordx4 v[{r}:{r+3}], v20, s[48:51], 0 offen {o.pflags}", tag)
        elif kind == "WO":
            a.I(f"buffer_load_dwordx4 v[{r}:{r+3}], v4, s[44:47], 0 offen offset:{i*896} {wf}", tag)
        elif kind == "W2":
            a.I(f"buffer_load_dwordx4 v[{r}:{r+3}], v5, s[52:55], 0 offen {wf}", tag)
    stream = [("K", i) for i in range(32)] + [("V", i) for i in range(32)]
    tailw = [("W2", 0), ("WO", 0), ("WO", 1)]
    issued = set()
    nxt = [0]
    specials = []
    def special(): specials.append(nxt[0])
    def flush_tailw():
        while tailw:
            t = tailw.pop(0); issue(t); issued.add(t)
    def slot():
        n = nxt[0]
        if n >= len(stream): return False
        skip = any(p + D <= n < p + D + o.boost for p in specials)
        if n >= D and not skip: a.wait_vm(stream[n - D])
        issue(stream[n]); issued.add(stream[n]); nxt[0] += 1
        if o.wo_early >= 0 and n >= len(stream) - 1 - o.wo_early:
            k = len(tailw) if n == len(stream) - 1 else o.wps
            for _ in range(k):
                if tailw:
                    t = tailw.pop(0); issue(t); issued.add(t)
        return True
    def landed(tag): return tag not in a.vm and tag in issued
    for _ in range(min(D, 4)): slot()
    srd(a, 40, 10, 448 * 8192)
    srd(a, 48, 16, 448 * 3584)
    srd(a, 60, 4, 1792)
    sCG, sRG, sCG1, sRG1 = sG, sOMG, sW, sXCC
    a.I(f"s_lshl_b32 s{sI}, s{sB}, 3")
    a.I(f"s_add_u32 s{sI}, s{sI}, s{sS}")
    a.I(f"s_and_b32 s{sCG}, s{sI}, 3")
    a.I(f"s_lshr_b32 s{sRG}, s{sI}, 2")
    a.I(f"s_and_b32 s{sRG1}, s2, 7")
    a.I(f"s_lshr_b32 s{sCG1}, s2, 3")
    a.I("v_lshrrev_b32 v23, 3, v1")
    a.I("v_and_b32 v25, 7, v1")
    a.I("v_lshlrev_b32 v24, 4, v25")
    a.I(f"s_mul_i32 s{sT}, s{sRG}, 112")
    a.I(f"s_lshl_b32 s{sU}, s3, 4")
    a.I(f"s_add_u32 s{sT}, s{sT}, s{sU}")
    a.I(f"v_add_u32 v21, s{sT}, v23")
    a.I(f"s_lshl_b32 s{sT}, s{sH}, 9")
    a.I(f"s_lshl_b32 s{sU}, s{sCG}, 7")
    a.I(f"s_add_u32 s{sT}, s{sT}, s{sU}")
    a.I("s_cmp_eq_u32 s3, 7")
    a.I(f"s_cselect_b32 s{sT}, {OOB}, s{sT}")
    a.I("v_lshl_add_u32 v3, v21, 13, v24")
    a.I(f"v_add_u32 v3, s{sT}, v3")
    if o.x & 1: a.I(f"v_mov_b32 v3, {OOB}")
    issue(("WQ", 0)); issue(("WQ", 1))
    a.I(f"s_mul_i32 s{sT}, s{sRG1}, 56")
    a.I(f"s_lshl_b32 s{sU}, s3, 3")
    a.I(f"s_add_u32 s{sT}, s{sT}, s{sU}")
    a.I(f"v_add_u32 v22, s{sT}, v23")
    a.I(f"s_lshl_b32 s{sT}, s{sCG1}, 7")
    a.I("s_cmp_eq_u32 s3, 7")
    a.I(f"s_cselect_b32 s{sT}, {OOB}, s{sT}")
    a.I("s_cmp_ge_u32 s2, 224")
    a.I(f"s_cselect_b32 s{sT}, {OOB}, s{sT}")
    a.I("v_mul_u32_u24 v20, 0xe00, v22")
    a.I(f"v_add3_u32 v20, v20, v24, s{sT}")
    if o.x & 2: a.I(f"v_mov_b32 v20, {OOB}")
    issue(("W1", 0))
    a.I("v_lshlrev_b32 v21, 1, v21")
    a.I("v_lshlrev_b32 v22, 1, v22")
    for r, va, off in ((36, 21, 0), (37, 21, 16), (38, 21, 896), (39, 21, 912), (40, 22, 0), (41, 22, 896)):
        a.I(f"buffer_load_ushort v{r}, v{va}, s[60:63], 0 offen offset:{off}", ("X", r))
    srd(a, 56, 30, WS_TS + 0x20000 if o.ts else WS_END)
    a.I("v_mov_b32 v21, 0")
    a.I(f"buffer_load_dword v32, v21, s[56:59], 0 offen offset:{WS_EP} sc1", "EP")
    srd(a, 36, 8, 64 << 20)
    srd(a, 44, 12, 4096 * 896)
    srd(a, 52, 20, 1792 * 896)
    srd(a, 64, 24, 896)
    srd(a, 68, 22, 896)
    srd(a, 72, 26, 1792)
    srd(a, 12, 18, 3584)
    a.I(f"s_cmp_ge_u32 s{sI}, 7")
    a.I(f"s_cselect_b32 s{sT}, 1, 0")
    a.I(f"s_lshl_b32 s{sPR}, s{sH}, 1")
    a.I(f"s_add_u32 s{sPR}, s{sPR}, s{sT}")
    a.I(f"s_mul_i32 s{sT}, s{sT}, 7")
    a.I(f"s_sub_u32 s{sCGW}, s{sI}, s{sT}")
    a.I(f"s_lshl_b32 s{sT}, s{sPR}, 3")
    a.I(f"s_add_u32 s{sT}, s{sT}, s3")
    a.I(f"s_mul_i32 s{sT}, s{sT}, {16*896}")
    a.I(f"s_lshl_b32 s{sU}, s{sCGW}, 7")
    a.I(f"s_add_u32 s{sT}, s{sT}, s{sU}")
    a.I(f"s_cmp_ge_u32 s{sI}, 14")
    a.I(f"s_cselect_b32 s{sT}, {OOB}, s{sT}")
    a.I("v_mul_u32_u24 v4, 0x700, v23")
    a.I(f"v_add3_u32 v4, v4, v24, s{sT}")
    a.I(f"s_mul_i32 s{sT}, s{sPR}, 56")
    a.I(f"s_lshl_b32 s{sCNT}, s3, 3")
    a.I(f"s_add_u32 s{sT}, s{sT}, s{sCNT}")
    a.I(f"v_add_u32 v22, s{sT}, v23")
    a.I(f"s_cmp_ge_u32 s{sI}, 14")
    a.I(f"s_cselect_b32 s{sU}, {OOB}, s{sU}")
    a.I("s_cmp_eq_u32 s3, 7")
    a.I(f"s_cselect_b32 s{sU}, {OOB}, s{sU}")
    a.I("v_mul_u32_u24 v5, 0x380, v22")
    a.I(f"v_add3_u32 v5, v5, v24, s{sU}")
    a.I(f"v_add_u32 v22, s{sT}, v25")
    a.I("v_lshlrev_b32 v26, 1, v22")
    a.I("buffer_load_ushort v35, v26, s[12:15], 0 offen", "B1")
    a.I(f"s_and_b32 s{sU}, s{sU}, {OOB}")
    a.I(f"s_add_u32 s{sU}, s{sU}, {WS_H}")
    a.I("v_lshrrev_b32 v26, 1, v22")
    a.I("v_mul_u32_u24 v63, 0x3800, v23")
    a.I("v_lshl_add_u32 v63, v26, 4, v63")
    a.I(f"v_add_u32 v63, s{sU}, v63")
    if o.x & 16: a.I(f"v_mov_b32 v63, {OOB}")
    if o.x & 4: a.I(f"v_mov_b32 v4, {OOB}")
    if o.x & 8: a.I(f"v_mov_b32 v5, {OOB}")
    a.I("v_lshrrev_b32 v6, 5, v1")
    a.I(f"s_mov_b32 s{sSELL}, 0x05040100")
    a.I(f"s_mov_b32 s{sSELH}, 0x07060302")
    a.I(f"s_mov_b32 s{sM3}, 0xcccccccc"); a.I(f"s_mov_b32 s{sM3+1}, 0xcccccccc")
    a.I(f"s_mov_b32 s{sM4}, 0xaaaaaaaa"); a.I(f"s_mov_b32 s{sM4+1}, 0xaaaaaaaa")
    a.I(f"s_and_b32 s{sT}, s{sI}, 1")
    a.I(f"s_lshl_b32 s{sU}, s{sH}, 1")
    a.I(f"s_add_u32 s{sT}, s{sT}, s{sU}")
    a.I(f"s_lshl_b32 s{sT}, s{sT}, 2")
    a.I(f"s_and_b32 s{sU}, s3, 3")
    a.I(f"s_add_u32 s{sTASK}, s{sT}, s{sU}")
    a.I(f"s_cmp_ge_u32 s{sI}, 14")
    a.I(f"s_cselect_b32 s{sRED}, 56, 0")
    a.I("s_cmp_ge_u32 s3, 4")
    a.I(f"s_cselect_b32 s{sRED}, 0, s{sRED}")
    a.I(f"s_cmp_ge_u32 s{sTASK}, 112")
    a.I(f"s_cselect_b32 s{sRED}, 0, s{sRED}")
    a.I(f"v_cmp_gt_u32 vcc, s{sRED}, v1")
    a.I(f"v_mov_b32 v26, {OOB}")
    a.I("v_cndmask_b32 v26, v26, v7, vcc")
    a.I(f"s_bfe_u32 s{sT}, s{sTASK}, 0x10003")
    a.I(f"s_mul_i32 s{sT}, s{sT}, 896")
    gx, gg = alloc("GX"), alloc("GG")
    a.I(f"buffer_load_dwordx4 v[{gx}:{gx+3}], v26, s[60:63], s{sT} offen", "GX")
    a.I(f"buffer_load_dwordx4 v[{gg}:{gg+3}], v26, s[64:67], 0 offen", "GG")
    a.I(f"s_lshr_b32 s{sU}, s{sTASK}, 4")
    a.I(f"s_lshl_b32 s{sU}, s{sU}, 7")
    a.I(f"s_and_b32 s{sCNT}, s{sTASK}, 7")
    a.I(f"s_lshl_b32 s{sCNT}, s{sCNT}, 4")
    a.I(f"s_add_u32 s{sU}, s{sU}, s{sCNT}")
    a.I("v_lshlrev_b32 v26, 1, v25")
    a.I(f"buffer_load_ushort v33, v26, s[68:71], s{sU} offen", "B2")
    a.I(f"s_add_u32 s{sT}, s{sT}, s{sU}")
    a.I("v_and_b32 v57, 0x39, v1")
    a.I("v_cmp_eq_u32 vcc, 0, v57")
    a.I(f"v_add_u32 v26, s{sT}, v26")
    a.I(f"v_mov_b32 v57, {OOB}")
    a.I("v_cndmask_b32 v57, v57, v26, vcc")
    a.I("v_lshrrev_b32 v12, 4, v1")
    a.I("v_bfe_u32 v13, v1, 3, 1")
    a.I("v_lshl_add_u32 v12, v13, 2, v12")
    a.I("v_lshl_add_u32 v11, v25, 3, v12")
    a.I(f"s_lshl_b32 s{sT}, s3, 8")
    a.I(f"v_lshl_add_u32 v34, v11, 2, s{sT}")
    a.I(f"s_lshl_b32 s{sT}, s3, 10")
    a.I(f"v_lshl_add_u32 v29, v11, 3, s{sT}")
    a.I(f"s_lshl_b32 s{sT}, s3, 2")
    a.I(f"v_mov_b32 v31, s{sT}")
    a.I(f"s_lshl_b32 s{sT}, s{sH}, 13")
    a.I(f"s_lshl_b32 s{sU}, s{sCG}, 9")
    a.I(f"s_add_u32 s{sT}, s{sT}, s{sU}")
    a.I(f"s_lshl_b32 s{sU}, s{sRG}, 11")
    a.I(f"s_add_u32 s{sT}, s{sT}, s{sU}")
    a.I(f"s_add_u32 s{sCG}, s{sT}, {WS_Q}")
    a.I(f"s_lshl_b32 s{sT}, s{sCG1}, 9")
    a.I(f"s_mul_i32 s{sU}, s{sRG1}, 14336")
    a.I(f"s_add_u32 s{sT}, s{sT}, s{sU}")
    a.I(f"s_add_u32 s{sT}, s{sT}, {WS_H}")
    a.I("s_cmp_ge_u32 s2, 224")
    a.I(f"s_cselect_b32 s{sT}, {OOB}, s{sT}")
    a.I("s_cmp_eq_u32 s3, 0")
    a.I(f"s_cselect_b32 s{sCG}, s{sCG}, s{sT}")
    a.I(f"s_mov_b32 s{sT}, 114688")
    a.I(f"s_cselect_b32 s{sT}, 0x20000, s{sT}")
    a.I("v_and_b32 v30, 31, v1")
    a.I("v_lshlrev_b32 v30, 4, v30")
    a.I(f"v_mul_lo_u32 v11, v6, s{sT}")
    a.I(f"v_add3_u32 v30, v30, v11, s{sCG}")
    if o.x & 128: a.I(f"v_mov_b32 v30, {OOB}")
    while nxt[0] < o.s_proj: slot()
    a.wait_vm("EP")
    a.I(f"v_readfirstlane_b32 s{sT}, v32")
    a.I(f"s_mul_i32 s{sT}, s{sT}, 0x9E3779B1")
    a.I(f"s_add_u32 s{sT}, s{sT}, 0x7F4A7C15")
    a.I(f"v_mov_b32 v32, s{sT}")
    for k in range(6): a.I(f"v_lshlrev_b32 v{42+k}, 16, v{36+k}")
    def tred8(b, dst):
        for e in range(4): a.I(f"v_permlane16_swap_b32 v{b+2*e}, v{b+1+2*e}")
        for e in range(4): a.I(f"v_add_f32 v{b+2*e}, v{b+2*e}, v{b+1+2*e}")
        a.I(f"v_permlane32_swap_b32 v{b}, v{b+2}"); a.I(f"v_permlane32_swap_b32 v{b+4}, v{b+6}")
        a.I(f"v_add_f32 v{b}, v{b}, v{b+2}"); a.I(f"v_add_f32 v{b+4}, v{b+4}, v{b+6}")
        a.I(dpp("v_add_f32", dst, b, b, "row_ror:8", bm="0x3"))
        a.I(dpp("v_add_f32", dst, b + 4, b + 4, "row_ror:8", bm="0xc"))
    def tred8x2(b0, d0, b1, d1):
        for b in (b0, b1):
            for e in range(4): a.I(f"v_permlane16_swap_b32 v{b+2*e}, v{b+1+2*e}")
        for b in (b0, b1):
            for e in range(4): a.I(f"v_add_f32 v{b+2*e}, v{b+2*e}, v{b+1+2*e}")
        for b in (b0, b1):
            a.I(f"v_permlane32_swap_b32 v{b}, v{b+2}"); a.I(f"v_permlane32_swap_b32 v{b+4}, v{b+6}")
        for b in (b0, b1):
            a.I(f"v_add_f32 v{b}, v{b}, v{b+2}"); a.I(f"v_add_f32 v{b+4}, v{b+4}, v{b+6}")
        for b, d in ((b0, d0), (b1, d1)): a.I(dpp("v_add_f32", d, b, b, "row_ror:8", bm="0x3"))
        for b, d in ((b0, d0), (b1, d1)): a.I(dpp("v_add_f32", d, b + 4, b + 4, "row_ror:8", bm="0xc"))
    def proj(srcs, st):
        for n, (tag, x) in enumerate(srcs):
            r = buf[tag]
            for e in range(4):
                a.I(f"v_dot2_f32_bf16 v{8+2*e}, v{r+e}, v{x}, {'0' if n == 0 else f'v{8+2*e}'}")
                a.I(f"v_dot2_f32_bf16 v{9+2*e}, v{r+e}, v{x+6}, {'0' if n == 0 else f'v{9+2*e}'}")
        tred8(8, 16 + st)
        a.I(f"ds_write_b32 v34, v{16+st} offset:{RP + st*2048}")
    proj([(("WQ", 0), 36), (("WQ", 1), 37)], 0)
    proj([(("WQ", 0), 38), (("WQ", 1), 39)], 1)
    slot()
    proj([(("W1", 0), 40)], 2)
    proj([(("W1", 0), 41)], 3)
    for t in (("WQ", 0), ("WQ", 1), ("W1", 0)): free(t)
    slot()
    a.I("v_lshrrev_b32 v20, 5, v0")
    a.I("v_and_b32 v21, 31, v0")
    a.I("v_lshlrev_b32 v21, 3, v21")
    a.I("v_lshl_add_u32 v21, v20, 11, v21")
    a.I("v_mov_b32 v20, 0")
    a.I(f"ds_write_b32 v20, v20 offset:{CN}")
    a.wait_lg()
    a.I("s_barrier")
    a.I("s_cmp_ge_u32 s3, 2")
    a.I("s_cbranch_scc1 L_pjdone")
    for w in range(8): a.I(f"ds_read_b64 v[{36+2*w}:{37+2*w}], v21 offset:{RP + w*256}", ("s8", w))
    for lv in (1, 2, 4):
        for w in range(0, 8, 2*lv):
            if lv == 1: a.wait_lg(("s8", w + 1))
            for k in range(2): a.I(f"v_add_f32 v{36+2*w+k}, v{36+2*w+k}, v{36+2*(w+lv)+k}")
    a.I("v_mov_b32 v38, v37"); a.I("v_mov_b32 v37, v32"); a.I("v_mov_b32 v39, v32")
    a.I("buffer_store_dwordx4 v[36:39], v30, s[56:59], 0 offen sc1"); a.vm.pop()
    a.label("L_pjdone"); special()
    slot()
    slot()
    a.wait_vm("B2")
    a.I(f"s_cmp_eq_u32 s{sRED}, 0")
    a.I("s_cbranch_scc1 L_nogate")
    for e in range(4):
        a.I(f"v_lshlrev_b32 v20, 16, v{gx+e}"); a.I(f"v_and_b32 v21, 0xffff0000, v{gx+e}")
        a.I(f"v_lshlrev_b32 v22, 16, v{gg+e}"); a.I(f"v_and_b32 v26, 0xffff0000, v{gg+e}")
        a.I("v_mul_f32 v20, v20, v22"); a.I("v_mul_f32 v21, v21, v26")
        a.I(f"v_cvt_pk_bf16_f32 v{8+e}, v20, v21")
    for e in range(4):
        a.I(f"v_lshlrev_b32 v20, 16, v{8+e}"); a.I(f"v_and_b32 v21, 0xffff0000, v{8+e}")
        a.I(f"v_add_f32 v{8+e}, v20, v21")
    a.I("v_add_f32 v8, v8, v9"); a.I("v_add_f32 v10, v10, v11"); a.I("v_add_f32 v8, v8, v10")
    free("GX"); free("GG")
    wave_reduce63(a, "v_add_f32", 8)
    a.I("v_cvt_pk_bf16_f32 v8, v8, v8")
    a.I("v_and_b32 v8, 0xffff0000, v8")
    a.I(f"v_mul_f32 v8, {hex(f2u(-1.4426950408889634))}, v8")
    a.I("v_exp_f32 v8, v8")
    a.I("v_add_f32 v8, 1.0, v8")
    a.I("v_rcp_f32 v8, v8")
    a.I("v_cvt_pk_bf16_f32 v8, v8, v8")
    a.I("v_and_b32 v8, 0xffff0000, v8")
    a.I("v_sub_f32 v9, 1.0, v8")
    a.I("v_cvt_pk_bf16_f32 v9, v9, v9")
    a.I("v_and_b32 v9, 0xffff0000, v9")
    a.I(f"v_readlane_b32 s{sG}, v8, 63")
    a.I(f"v_readlane_b32 s{sOMG}, v9, 63")
    a.I("v_and_b32 v10, 16, v1")
    a.I("v_cmp_ne_u32 vcc, 0, v10")
    a.I("v_lshlrev_b32 v33, 16, v33")
    a.I(f"v_mov_b32 v56, s{sG}")
    a.I(f"v_mov_b32 v8, s{sOMG}")
    a.I("v_cndmask_b32 v33, 0, v33, vcc")
    a.I("v_cndmask_b32 v56, v56, v8, vcc")
    a.label("L_nogate")
    stamp()
    def poll_check(name, regs, mask, reissue, sleep=2):
        if o.x & {"h": 16, "ml": 32, "q": 64}[name]:
            a.label(f"L_{name}ok"); return
        a.I(f"s_mov_b32 s{sCNT}, {SPIN}")
        a.label(f"L_{name}chk")
        a.I(f"v_cmp_ne_u32 vcc, v{regs[0]}, v32")
        for r in regs[1:]:
            a.I(f"v_cmp_ne_u32 s[98:99], v{r}, v32")
            a.I("s_or_b64 vcc, vcc, s[98:99]")
        if mask == "lo":
            a.I("s_cmp_lg_u32 vcc_lo, 0")
        else:
            a.I("s_cmp_lg_u64 vcc, 0")
        a.I(f"s_cbranch_scc0 L_{name}ok")
        a.I(f"s_sub_u32 s{sCNT}, s{sCNT}, 1")
        a.I(f"s_cbranch_scc1 L_{name}ok")
        if sleep: a.I(f"s_sleep {sleep}")
        n0 = len(a.vm)
        reissue()
        a.vm = a.vm[:n0]
        a.I("s_waitcnt vmcnt(0)")
        a.I(f"s_branch L_{name}chk")
        a.label(f"L_{name}ok")
        if o.ts:
            a.I(f"s_sub_u32 s98, {SPIN}, s{sCNT}")
            a.I(f"v_writelane_b32 v{VTS}, s98, {dict(q=10, h=11, ml=12)[name]}")
    while nxt[0] < o.s_poll: slot()
    a.I(f"s_lshl_b32 s{sW}, s{sBH}, 13")
    a.I(f"s_add_u32 s{sW}, s{sW}, {WS_Q}")
    a.I("v_lshrrev_b32 v22, 4, v1")
    a.I("v_lshlrev_b32 v22, 11, v22")
    a.I("v_and_b32 v21, 15, v1")
    a.I("v_lshl_add_u32 v21, v21, 2, v31")
    a.I("v_mul_u32_u24 v20, 15, v31")
    a.I("v_add_u32 v21, v21, v20")
    a.I("v_lshl_add_u32 v22, v21, 2, v22")
    qp = lambda tag=None: a.I(f"buffer_load_dwordx4 v[8:11], v22, s[56:59], s{sW} offen sc1", tag)
    if o.x & 64: a.I(f"v_mov_b32 v22, {OOB}")
    qp("QP"); special()
    for _ in range(D + o.boost): slot()
    a.wait_vm("QP")
    poll_check("q", [9, 11], -1, qp)
    def red45_pk(x, y, ror=False):
        a.I(f"v_permlane16_swap_b32 v{x}, v{y}")
        a.I(f"v_add_f32 v{x}, v{x}, v{y}")
        if ror: a.I(dpp("v_add_f32", x, x, x, "row_ror:8"))
        a.I(f"v_mov_b32 v{y}, v{x}")
        a.I(f"v_permlane32_swap_b32 v{x}, v{y}")
        a.I(f"v_add_f32 v{x}, v{x}, v{y}")
        a.I(f"v_mov_b32 v{y}, v{x}")
        a.I(f"v_permlane16_swap_b32 v{x}, v{y}")
        a.I(f"v_cvt_pk_bf16_f32 v{x}, v{x}, v{y}")
    red45_pk(8, 10)
    a.I(f"ds_write_b32 v21, v8 offset:{QS}")
    slot()
    a.wait_lg()
    a.I("s_barrier")
    stamp()
    a.I("v_and_b32 v24, 31, v1")
    a.I("v_lshlrev_b32 v24, 4, v24")
    a.I(f"ds_read_b128 v[16:19], v24 offset:{QS}", "q")
    a.I("v_lshlrev_b32 v28, 1, v24")
    a.I("v_lshl_add_u32 v28, v6, 4, v28")
    a.I(f"s_lshl_b32 s{sT}, s3, 10")
    a.I(f"v_add_u32 v28, s{sT}, v28")
    slot()
    a.wait_lg()
    lvl = {}
    tfree = [20, 21, 22, 23, 26, 27, 8, 9, 10, 11, 12, 13]
    def merge(level, A, B):
        if level == 0:
            a.I(f"v_permlane16_swap_b32 v{A}, v{B}")
            a.I(f"v_add_f32 v{A}, v{A}, v{B}")
            tfree.append(B); return A
        if level in (1, 2):
            R = tfree.pop(0)
            if level == 1:
                a.I(dpp("v_add_f32", R, A, A, "row_ror:8", bm="0x3"))
                a.I(dpp("v_add_f32", R, B, B, "row_ror:8", bm="0xc"))
            else:
                a.I(dpp("v_add_f32", R, A, A, "row_shl:4", bm="0x5"))
                a.I(dpp("v_add_f32", R, B, B, "row_shr:4", bm="0xa"))
            tfree.extend([A, B]); return R
        q = "quad_perm:[2,3,0,1]" if level == 3 else "quad_perm:[1,0,3,2]"
        m = f"s[{sM3}:{sM3+1}]" if level == 3 else f"s[{sM4}:{sM4+1}]"
        a.I(dpp("v_add_f32", A, A, A, q))
        a.I(dpp("v_add_f32", B, B, B, q))
        a.I(f"v_cndmask_b32 v{A}, v{A}, v{B}, {m}")
        tfree.append(B); return A
    def kcons(i):
        a.wait_vm(("K", i))
        r = buf[("K", i)]
        t = tfree.pop(0)
        a.I(f"v_dot2_f32_bf16 v{t}, v{r}, v16, 0")
        for e in range(1, 4): a.I(f"v_dot2_f32_bf16 v{t}, v{r+e}, v{16+e}, v{t}")
        free(("K", i))
        L = 0
        while L in lvl:
            t = merge(L, lvl.pop(L), t); L += 1
        lvl[L] = t
    kd = 0
    while kd < 32:
        c = 0
        while kd < 32 and c < o.kps and landed(("K", kd)):
            kcons(kd); kd += 1; c += 1
        if kd < 32: slot()
    vS = lvl[5]
    a.I(f"v_cvt_pk_bf16_f32 v{vS}, v{vS}, v{vS}")
    a.I(f"v_and_b32 v30, 0xffff0000, v{vS}")
    a.I("v_mov_b32 v20, v30")
    wave_reduce63(a, "v_max_f32", 20)
    a.I(f"v_readlane_b32 s{sT}, v20, 63")
    a.I("v_bfrev_b32 v22, v1")
    a.I("v_bfe_u32 v22, v22, 27, 5")
    a.I(f"v_mov_b32 v34, s{sT}")
    a.I("v_lshlrev_b32 v22, 2, v22")
    a.I(f"s_lshl_b32 s{sT}, s3, 8")
    a.I(f"v_lshl_add_u32 v23, v6, 7, s{sT}")
    a.I("v_add_u32 v22, v22, v23")
    a.I("v_sub_f32 v20, v30, v34")
    a.I(f"v_mul_f32 v20, {hex(f2u(C_SCALE))}, v20")
    a.I("v_exp_f32 v20, v20")
    a.I(f"ds_write_b32 v22, v20 offset:{PS}")
    a.I("v_mov_b32 v21, v20")
    PB = [16, 24]
    a.I(f"ds_read_b128 v[16:19], v23 offset:{PS}", ("p", 0))
    slot()
    stamp()
    wave_reduce63(a, "v_add_f32", 21)
    a.I(f"v_readlane_b32 s{sT}, v21, 63")
    a.I("v_mov_b32 v40, v34")
    a.I("v_lshlrev_b32 v22, 1, v31")
    a.I(f"v_mov_b32 v41, s{sT}")
    a.I("v_mov_b32 v21, 0")
    a.I("v_mov_b32 v20, 1")
    a.I(f"s_getreg_b32 s{sXCC}, hwreg(HW_REG_XCC_ID)")
    a.I(f"s_and_b32 s{sXCC}, s{sXCC}, 15")
    if o.fakex: a.I(f"s_lshr_b32 s{sXCC}, s2, 5")
    a.I("s_mov_b64 exec, 1")
    a.I(f"ds_write_b64 v22, v[40:41] offset:{MX}")
    a.I(f"ds_add_rtn_u32 v20, v21, v20 offset:{CN}")
    a.I("s_mov_b64 exec, -1")
    slot()
    a.wait_lg()
    a.I(f"v_readfirstlane_b32 s{sT}, v20")
    a.I(f"s_cmp_lg_u32 s{sT}, 7")
    a.I("s_cbranch_scc1 L_noml")
    a.I("v_and_b32 v22, 7, v1")
    a.I("v_lshlrev_b32 v22, 3, v22")
    a.I(f"ds_read_b64 v[40:41], v22 offset:{MX}")
    a.I("v_cmp_gt_u32 vcc, 2, v1")
    a.I(f"v_mov_b32 v22, {OOB}")
    a.I("v_cndmask_b32 v22, v22, v7, vcc")
    a.I(f"v_mov_b32 v20, s{sXCC}")
    a.I(f"s_lshl_b32 s{sT}, s{sROW}, 7")
    a.I(f"s_add_u32 s{sT}, s{sT}, {WS_ML}")
    a.wait_lg()
    a.I("v_mov_b32 v43, v40")
    for c in X8: a.I(dpp("v_max_f32", 43, 43, 43, c))
    a.I("v_sub_f32 v40, v40, v43")
    a.I(f"v_mul_f32 v40, {hex(f2u(C_SCALE))}, v40")
    a.I("v_exp_f32 v40, v40")
    a.I("v_mul_f32 v42, v41, v40")
    for c in X8: a.I(dpp("v_add_f32", 42, 42, 42, c))
    a.I(f"v_cndmask_b32 v40, v43, v20, s[{sM4}:{sM4+1}]"); a.I("v_mov_b32 v41, v32"); a.I("v_mov_b32 v43, v32")
    if o.x & 256: a.I(f"v_mov_b32 v22, {OOB}")
    a.I(f"buffer_store_dwordx4 v[40:43], v22, s[56:59], s{sT} offen sc1"); a.vm.pop()
    a.label("L_noml")
    def vcons(i):
        if i % 4 == 0:
            c = i // 4
            if c + 1 < 8:
                nb = PB[(c + 1) & 1]
                a.I(f"ds_read_b128 v[{nb}:{nb+3}], v23 offset:{PS + (c+1)*16}", ("p", c + 1))
            a.wait_lg(("p", c))
        a.wait_vm(("V", i))
        r = buf[("V", i)]
        p = PB[(i // 4) & 1] + (i % 4)
        for e in range(4):
            a.I(f"v_lshlrev_b32 v20, 16, v{r+e}")
            a.I(f"v_and_b32 v21, 0xffff0000, v{r+e}")
            op = "v_mul_f32" if i == 0 else "v_fmac_f32"
            a.I(f"{op} v{8+2*e}, v20, v{p}")
            a.I(f"{op} v{9+2*e}, v21, v{p}")
        free(("V", i))
    vd = 0
    mlstate = 0
    def ml_issue(tag=None):
        a.I(f"buffer_load_dwordx4 v[36:39], v22, s[56:59], s{sW} offen sc1", tag)
    hstate = [0]
    def hp(tag=None):
        a.I("buffer_load_dwordx4 v[44:47], v63, s[56:59], 0 offen sc1")
        a.I(f"buffer_load_dwordx4 v[48:51], v63, s[56:59], s{sW} offen sc1", tag)
    def hstep():
        if hstate[0] == 0 and nxt[0] >= o.s_h:
            a.I(f"s_mov_b32 s{sW}, 114688")
            hp("HP"); hstate[0] = 1; special()
        elif hstate[0] == 1 and "HP" not in a.vm:
            a.I(f"s_cmp_ge_u32 s{sI}, 14")
            a.I("s_cbranch_scc1 L_hok")
            a.I("s_cmp_eq_u32 s3, 7")
            a.I("s_cbranch_scc1 L_hok")
            poll_check("h", [45, 47, 49, 51], -1, hp)
            a.I("v_lshlrev_b32 v35, 16, v35")
            a.I(f"v_cndmask_b32 v20, v44, v46, s[{sM4}:{sM4+1}]")
            a.I(f"v_cndmask_b32 v48, v48, v50, s[{sM4}:{sM4+1}]")
            red45_pk(20, 48, ror=True)
            a.I("v_lshlrev_b32 v21, 16, v20"); a.I("v_and_b32 v22, 0xffff0000, v20")
            a.I("v_add_f32 v21, v35, v21"); a.I("v_add_f32 v22, v35, v22")
            a.I("v_cvt_pk_bf16_f32 v20, v21, v22")
            a.I("v_lshlrev_b32 v21, 16, v20"); a.I("v_and_b32 v22, 0xffff0000, v20")
            a.I("v_max_f32 v21, 0, v21"); a.I("v_max_f32 v22, 0, v22")
            a.I("v_mul_f32 v21, v21, v21"); a.I("v_mul_f32 v22, v22, v22")
            a.I("v_cvt_pk_bf16_f32 v44, v21, v22")
            a.I("v_lshrrev_b32 v45, 3, v1")
            a.I("v_lshlrev_b32 v45, 2, v45")
            a.I("ds_bpermute_b32 v35, v45, v44", "hb")
            hstate[0] = 2
    wp = []
    def wprep():
        a.wait_lg("hb")
        a.wait_vm(("WO", 1))
        r = buf[("W2", 0)]
        a.I("v_and_b32 v44, 0xffff, v35"); a.I("v_lshlrev_b32 v45, 16, v35")
        a.I("v_lshrrev_b32 v46, 16, v35"); a.I("v_and_b32 v47, 0xffff0000, v35")
        for b in range(2):
            for e in range(4):
                a.I(f"v_dot2_f32_bf16 v{ACC+8*b+2*e}, v{r+e}, v{44+2*b}, 0")
                a.I(f"v_dot2_f32_bf16 v{ACC+8*b+2*e+1}, v{r+e}, v{45+2*b}, 0")
        A = [buf[("WO", 0)] + e for e in range(4)]; B = [buf[("WO", 1)] + e for e in range(4)]
        spare = [30]
        for e in range(4):
            t = spare.pop(0)
            a.I(f"v_perm_b32 v{t}, v{B[e]}, v{A[e]}, s{sSELL}")
            a.I(f"v_perm_b32 v{B[e]}, v{B[e]}, v{A[e]}, s{sSELH}")
            spare.append(A[e]); wp.extend([t, B[e]])
        tred8x2(ACC, 49, ACC + 8, 51)
    while vd < 32:
        c = 0
        while vd < 32 and c < o.vps and (landed(("V", vd)) or nxt[0] >= len(stream)):
            vcons(vd); vd += 1; c += 1
            if o.wo_early < 0 and vd == 28 - o.wo_early: flush_tailw()
        hstep()
        if mlstate == 0 and nxt[0] >= o.s_ml and hstate[0] == 2:
            a.I("v_lshrrev_b32 v30, 4, v1")
            a.I(f"v_xor_b32 v30, s{sB}, v30")
            a.I("v_lshlrev_b32 v30, 14, v30")
            a.I("v_bfe_u32 v22, v1, 1, 3")
            a.I("v_lshl_add_u32 v30, v22, 7, v30")
            a.I("v_and_b32 v22, 1, v1")
            a.I("v_lshl_add_u32 v30, v22, 4, v30")
            a.I("v_cmp_gt_u32 vcc, 32, v1")
            a.I(f"v_mov_b32 v22, {OOB}")
            a.I("v_cndmask_b32 v22, v22, v30, vcc")
            a.I(f"s_lshl_b32 s{sW}, s{sH}, 10")
            a.I(f"s_add_u32 s{sW}, s{sW}, {WS_ML}")
            if o.x & 32: a.I(f"v_mov_b32 v22, {OOB}")
            ml_issue("MLP"); special()
            a.I(f"s_lshl_b32 s{sT}, s{sBH}, 14")
            a.I(f"s_lshl_b32 s{sU}, s{sS}, 4")
            a.I(f"s_add_u32 s{sT}, s{sT}, s{sU}")
            a.I("v_and_b32 v30, 3, v0")
            a.I("v_cmp_eq_u32 vcc, 0, v30")
            a.I(f"v_lshl_add_u32 v60, v0, 5, s{sT}")
            a.I(f"v_mov_b32 v61, {OOB}")
            a.I("v_cndmask_b32 v60, v61, v60, vcc")
            a.I("v_lshrrev_b32 v59, 2, v0")
            a.I("v_lshrrev_b32 v58, 3, v59")
            a.I("v_lshlrev_b32 v58, 12, v58")
            a.I("v_and_b32 v62, 7, v59")
            a.I("v_lshl_add_u32 v58, v62, 4, v58")
            a.I(f"s_lshl_b32 s{sT}, s{sCGW}, 16")
            a.I(f"s_lshl_b32 s{sU}, s{sPR}, 7")
            a.I(f"s_add_u32 s{sT}, s{sT}, s{sU}")
            a.I(f"v_add_u32 v58, s{sT}, v58")
            a.I("v_cndmask_b32 v58, v61, v58, vcc")
            a.I("v_lshlrev_b32 v59, 3, v59")
            a.I("v_lshl_add_u32 v59, v30, 11, v59")
            a.I(f"s_lshl_b32 s{sT}, s{sPR}, 13")
            a.I(f"s_lshl_b32 s{sU}, s3, 10")
            a.I(f"s_add_u32 s{sT}, s{sT}, s{sU}")
            a.I(f"s_cmp_ge_u32 s{sI}, 14")
            a.I(f"s_cselect_b32 s{sT}, {OOB}, s{sT}")
            a.I(f"v_add_u32 v61, s{sT}, v7")
            a.I(f"s_lshl_b32 s{sT}, s{sTASK}, 12")
            a.I(f"v_add_u32 v62, s{sT}, v7")
            if o.opre:
                so = set_so(WS_O)
                a.I(f"buffer_load_dwordx4 v[40:43], v61, s[56:59], {so} offen sc1")
                so = set_so(WS_O + 0x40000)
                a.I(f"buffer_load_dwordx4 v[40:43], v61, s[56:59], {so} offen sc1", "OPRE")
            mlstate = 1
        elif mlstate == 1 and "MLP" not in a.vm and "OPRE" not in a.vm:
            poll_check("ml", [37, 39], "lo", ml_issue)
            a.I(f"v_cmp_ne_u32 vcc, s{sXCC}, v36")
            a.I("v_mov_b32 v37, v36")
            a.I(f"s_and_b32 s{sXCC}, vcc_lo, {'0xaaaaaaaa' if not (o.x & 32) else 0}")
            for cc in ("quad_perm:[2,3,0,1]", "row_ror:4", "row_ror:8"):
                a.I(dpp("v_max_f32", 37, 37, 37, cc))
            a.I("v_sub_f32 v36, v36, v37")
            a.I("v_sub_f32 v39, v34, v37")
            a.I(f"v_mul_f32 v36, {hex(f2u(C_SCALE))}, v36")
            a.I(f"v_mul_f32 v39, {hex(f2u(C_SCALE))}, v39")
            a.I("v_exp_f32 v36, v36")
            a.I("v_exp_f32 v39, v39")
            a.I("v_mul_f32 v38, v38, v36")
            for cc in ("quad_perm:[2,3,0,1]", "row_ror:4", "row_ror:8"):
                a.I(dpp("v_add_f32", 38, 38, 38, cc))
            a.I("v_rcp_f32 v38, v38")
            a.I("v_mul_f32 v38, v38, v39")
            a.I(f"v_readfirstlane_b32 s{sW}, v38")
            mlstate = 2
        elif mlstate == 2 and not wp and landed(("WO", 1)):
            wprep()
        slot()
    assert mlstate == 2
    stamp()
    for k in range(4): a.I(f"v_permlane32_swap_b32 v{8+k}, v{12+k}")
    for k in range(4): a.I(f"v_add_f32 v{8+k}, v{8+k}, v{12+k}")
    for k in range(4): a.I(f"v_mul_f32 v{8+k}, s{sW}, v{8+k}")
    a.I(f"ds_write_b128 v28, v[8:11] offset:{OA}")
    a.I(f"s_mov_b32 s{sT}, {WS_O}")
    a.I(f"s_mov_b32 s{sU}, {WS_O + 0x40000}")
    a.I(f"s_cmp_lg_u32 s{sXCC}, 0")
    a.wait_lg()
    a.I("s_barrier")
    def reduce8(base):
        a.I(f"ds_read_b64 v[36:37], v59 offset:{base}")
        a.I(f"ds_read_b64 v[40:41], v59 offset:{base+1024}")
        a.I("v_mov_b32 v39, v32")
        a.wait_lg()
        a.I("v_add_f32 v36, v36, v40"); a.I("v_add_f32 v38, v37, v41")
        a.I("v_mov_b32 v37, v32")
        for c in ("quad_perm:[1,0,3,2]", "quad_perm:[2,3,0,1]"):
            a.I(dpp("v_add_f32", 36, 36, 36, c)); a.I(dpp("v_add_f32", 38, 38, 38, c))
    reduce8(OA)
    a.I("s_cbranch_scc1 L_oslow")
    a.I(f"buffer_store_dwordx4 v[36:39], v60, s[56:59], s{sT} offen {o.oflags}"); a.vm.pop()
    a.I("s_branch L_ost")
    a.label("L_oslow", nop=False)
    a.I(f"buffer_store_dwordx4 v[36:39], v60, s[56:59], s{sT} offen sc1"); a.vm.pop()
    a.label("L_ost", nop=False)
    stamp()
    a.I(f"s_cmp_ge_u32 s{sI}, 14")
    a.I("s_cbranch_scc1 L_red")
    if not wp: wprep()
    a.I(f"s_mov_b32 s{sCNT}, {SPIN}")
    a.label("L_opoll", nop=False)
    a.I(f"buffer_load_dwordx4 v[16:19], v61, s[56:59], s{sT} offen sc1")
    a.I(f"buffer_load_dwordx4 v[20:23], v61, s[56:59], s{sU} offen sc1")
    a.I(f"s_sub_u32 s{sCNT}, s{sCNT}, 1")
    a.I("s_cbranch_scc1 L_ook")
    if o.osleep: a.I(f"s_sleep {o.osleep}")
    a.I("s_waitcnt vmcnt(0)")
    a.I("v_cmp_ne_u32 vcc, v17, v32")
    a.I("v_cmp_ne_u32 s[98:99], v19, v32")
    a.I("v_cmp_ne_u32 s[4:5], v21, v32")
    a.I("v_cmp_ne_u32 s[6:7], v23, v32")
    a.I("s_or_b64 vcc, vcc, s[98:99]")
    a.I("s_or_b64 s[4:5], s[4:5], s[6:7]")
    a.I("s_or_b64 vcc, vcc, s[4:5]")
    a.I("s_cbranch_scc1 L_opoll")
    a.label("L_ook", nop=False)
    a.vm = []
    stamp()
    for c in X8:
        for r in (16, 18, 20, 22): a.I(dpp("v_add_f32", r, r, r, c))
    a.I("v_cvt_pk_bf16_f32 v16, v16, v18")
    a.I("v_cvt_pk_bf16_f32 v20, v20, v22")
    for c in range(8): a.I(f"v_dot2_f32_bf16 v{ACC+c}, v{wp[c]}, v16, 0")
    for c in range(8): a.I(f"v_dot2_f32_bf16 v{ACC+8+c}, v{wp[c]}, v20, 0")
    tred8x2(ACC, 48, ACC + 8, 50)
    a.I(f"ds_write_b64 v29, v[48:49] offset:{OP}")
    a.I(f"ds_write_b64 v29, v[50:51] offset:{OP+512}")
    a.I(f"s_mov_b32 s{sT}, {WS_P}")
    a.wait_lg()
    a.I("s_barrier")
    reduce8(OP)
    a.I(f"buffer_store_dwordx4 v[36:39], v58, s[56:59], s{sT} offen {o.pstflags}")
    stamp()
    a.I("s_branch L_fin")
    a.label("L_red", nop=False)
    if o.ts:
        nst[0] -= 2; stamp(); stamp()
    a.I(f"s_cmp_eq_u32 s{sRED}, 0")
    a.I("s_cbranch_scc1 L_fin")
    a.I(f"s_mov_b32 s{sT}, {WS_P}")
    a.I(f"s_mov_b32 s{sCNT}, {SPIN}")
    for j in range(4): a.I(f"s_mov_b64 s[{4+2*j}:{5+2*j}], -1")
    a.label("L_rpoll", nop=False)
    for j in range(4):
        a.I(f"s_mov_b64 exec, s[{4+2*j}:{5+2*j}]")
        a.I(f"s_cbranch_execz L_rp{j}")
        a.I(f"buffer_load_dwordx4 v[{8+4*j}:{11+4*j}], v62, s[56:59], s{sT} offen offset:{1024*j} sc1")
        a.label(f"L_rp{j}", nop=False)
    a.I("s_mov_b64 exec, -1")
    a.I("s_waitcnt vmcnt(0)"); a.vm = []
    for j in range(4):
        a.I(f"v_cmp_ne_u32 s[{4+2*j}:{5+2*j}], v{9+4*j}, v32")
        a.I(f"v_cmp_ne_u32 s[{16+2*j}:{17+2*j}], v{11+4*j}, v32")
    for j in range(4): a.I(f"s_or_b64 s[{4+2*j}:{5+2*j}], s[{4+2*j}:{5+2*j}], s[{16+2*j}:{17+2*j}]")
    a.I("s_or_b64 vcc, s[4:5], s[6:7]")
    a.I("s_or_b64 s[98:99], s[8:9], s[10:11]")
    a.I("s_or_b64 vcc, vcc, s[98:99]")
    a.I("s_cbranch_scc0 L_rok")
    if o.rsleep: a.I(f"s_sleep {o.rsleep}")
    a.I(f"s_sub_u32 s{sCNT}, s{sCNT}, 1")
    a.I("s_cbranch_scc0 L_rpoll")
    a.label("L_rok", nop=False)
    a.I("v_add_f32 v8, v8, v12"); a.I("v_add_f32 v10, v10, v14"); a.I("v_add_f32 v16, v16, v20"); a.I("v_add_f32 v18, v18, v22")
    a.I("v_add_f32 v8, v8, v16"); a.I("v_add_f32 v10, v10, v18")
    a.I("v_permlane16_swap_b32 v8, v10")
    a.I("v_add_f32 v8, v8, v10")
    a.I(dpp("v_add_f32", 8, 8, 8, "row_ror:8"))
    a.I("v_mov_b32 v9, v8")
    a.I("v_permlane32_swap_b32 v8, v9")
    a.I("v_add_f32 v8, v8, v9")
    a.I("v_cvt_pk_bf16_f32 v8, v8, v8")
    a.I("v_and_b32 v8, 0xffff0000, v8")
    a.I("v_add_f32 v8, v8, v33")
    a.I("v_cvt_pk_bf16_f32 v8, v8, v8")
    a.I("v_and_b32 v8, 0xffff0000, v8")
    a.I("v_mul_f32 v8, v8, v56")
    a.I("v_cvt_pk_bf16_f32 v8, v8, v8")
    a.I("v_and_b32 v8, 0xffff0000, v8")
    a.I("v_mov_b32 v9, v8")
    a.I("v_permlane16_swap_b32 v8, v9")
    a.I("v_add_f32 v8, v8, v9")
    a.I("v_mov_b32_dpp v9, v8 quad_perm:[1,0,3,2] row_mask:0xf bank_mask:0xf")
    a.I("v_cvt_pk_bf16_f32 v8, v8, v9")
    a.I(f"buffer_store_dword v8, v57, s[72:75], 0 offen {o.outflags}")
    a.I(f"s_cmp_lg_u32 s{sTASK}, 0")
    a.I("s_cbranch_scc1 L_fin")
    a.I("v_mov_b32 v9, 0")
    a.I("s_mov_b64 exec, 1")
    a.I(f"buffer_store_dword v32, v9, s[56:59], 0 offen offset:{WS_EP} sc1")
    a.I("s_mov_b64 exec, -1")
    a.label("L_fin", nop=bool(o.ts))
    if o.ts:
        stamp()
        a.I("s_getreg_b32 s98, hwreg(HW_REG_XCC_ID)")
        a.I(f"v_writelane_b32 v{VTS}, s98, 15")
        a.I("v_cmp_gt_u32 vcc, 16, v1")
        a.I(f"v_mov_b32 v21, {OOB}")
        a.I("v_lshlrev_b32 v20, 2, v1")
        a.I("v_cndmask_b32 v20, v21, v20, vcc")
        a.I("s_lshl_b32 s98, s2, 3"); a.I("s_add_u32 s98, s98, s3"); a.I("s_lshl_b32 s98, s98, 6")
        a.I(f"s_add_u32 s98, s98, {WS_TS}")
        a.I(f"buffer_store_dword v{VTS}, v20, s[56:59], s98 offen")
    a.label("L_end", nop=False)
    a.I("s_endpgm")
    print("buffer high-water:", hiwater[0], file=sys.stderr)

def main():
    ap = argparse.ArgumentParser()
    ap.add_argument("-o", default="k.s")
    ap.add_argument("--kvflags", default="nt")
    ap.add_argument("--wflags", default="nt")
    ap.add_argument("--pflags", default="nt")
    ap.add_argument("--depth", type=int, default=4)
    ap.add_argument("--gran", type=int, default=4096)
    ap.add_argument("--s_proj", type=int, default=8)
    ap.add_argument("--s_poll", type=int, default=16)
    ap.add_argument("--s_ml", type=int, default=52)
    ap.add_argument("--s_h", type=int, default=42)
    ap.add_argument("--wo_early", type=int, default=-1)
    ap.add_argument("--wps", type=int, default=1)
    ap.add_argument("--kps", type=int, default=3)
    ap.add_argument("--oflags", default="")
    ap.add_argument("--outflags", default="")
    ap.add_argument("--pstflags", default="sc1")
    ap.add_argument("--boost", type=int, default=0)
    ap.add_argument("--vps", type=int, default=2)
    ap.add_argument("--fakex", type=int, default=0)
    ap.add_argument("--opre", type=int, default=0)
    ap.add_argument("--osleep", type=int, default=0)
    ap.add_argument("--rsleep", type=int, default=2)
    ap.add_argument("--spin", type=int, default=17)
    ap.add_argument("--x", type=int, default=0)
    ap.add_argument("--ts", type=int, default=0)
    o = ap.parse_args()
    a = Asm()
    a.raw(HDR.rstrip("\n"))
    a.raw(f"; @launch grid=(256,1,1) block=(512,1,1) lds={LDS_BYTES}")
    a.raw('.amdgcn_target "amdgcn-amd-amdhsa--gfx950"')
    a.raw(".text")
    gen(a, o)
    a.raw('.section .rodata,"a"'); a.raw(".p2align 6")
    a.raw(f".amdhsa_kernel {KN}")
    a.raw("  .amdhsa_next_free_vgpr 256"); a.raw("  .amdhsa_next_free_sgpr 102"); a.raw("  .amdhsa_accum_offset 256")
    a.raw("  .amdhsa_group_segment_fixed_size 0"); a.raw("  .amdhsa_kernarg_size 112"); a.raw("  .amdhsa_user_sgpr_count 2")
    a.raw("  .amdhsa_user_sgpr_kernarg_segment_ptr 1"); a.raw("  .amdhsa_system_sgpr_workgroup_id_x 1")
    a.raw("  .amdhsa_float_denorm_mode_32 3")
    a.raw(".end_amdhsa_kernel")
    open(o.o, "w").write(a.text())
main()
```

```python
import sys, argparse, struct
from asmlib import Asm
KN = "gated_mix__mha_block_cached__dense_activation_squared_relu__decode_kernel"
HDR = open("gated_mix__mha_block_cached__dense_activation_squared_relu__decode.s.ref").read().split("; Override launch")[0]
def f2u(f): return struct.unpack("<I", struct.pack("<f", f))[0]
QS = 0
MX = 512
CN = 576
PS = 1024
RP = 4096
OA = 4096
OP = 12288
LDS_BYTES = 20480
WS_EP = 0
WS_ML = 0x8000
WS_Q = 0x10000
WS_H = 0x50000
WS_O = 0x90000
WS_P = 0x110000
WS_END = 0x180000
WS_TS = 0x400000
C_SCALE = 0.0625 * 1.4426950408889634
OOB = "0x80000000"

def srd(a, d, p, nbytes):
    a.I(f"s_mov_b32 s{d}, s{p}"); a.I(f"s_mov_b32 s{d+1}, s{p+1}")
    a.I(f"s_mov_b32 s{d+2}, {nbytes}"); a.I(f"s_mov_b32 s{d+3}, 0x20000")
def dpp(op, d, s0, s1, ctrl, rm="0xf", bm="0xf"):
    return f"{op}_dpp v{d}, v{s0}, v{s1} {ctrl} row_mask:{rm} bank_mask:{bm}"
def wave_reduce63(a, op, vs):
    if isinstance(vs, int): vs = [vs]
    for c, rm in (("quad_perm:[1,0,3,2]", "0xf"), ("quad_perm:[2,3,0,1]", "0xf"), ("row_half_mirror", "0xf"), ("row_mirror", "0xf"),
                  ("row_bcast:15", "0xa"), ("row_bcast:31", "0xc")):
        for v in vs: a.I(dpp(op, v, v, v, c, rm=rm))
X8 = ("quad_perm:[1,0,3,2]", "quad_perm:[2,3,0,1]", "row_half_mirror")

def gen(a, o):
    D = o.depth
    SPIN = 1 << o.spin
    kvf, wf = o.kvflags, o.wflags
    nst = [0]
    VTS = 255
    def stamp(lvl=1):
        if o.ts != lvl and not (lvl == 3 and o.ts): return
        a.I("s_memrealtime s[98:99]")
        a.I("s_waitcnt lgkmcnt(0)"); a.smem = False; a.lg = []
        a.I(f"v_writelane_b32 v{VTS}, s98, {nst[0]}")
        nst[0] += 1
    (sH, sB, sS, sI, sROW, sT, sU, sSO, sSELL, sSELH, sXCC, sBH, sCGW, sPR, sTASK, sCNT, sCG, sRG, sW, sRED) = range(76, 96)
    sM3, sM4 = 100, 96
    sCG1, sRG1, sEP = sW, sXCC, sTASK
    a.raw(f".globl {KN}"); a.raw(".p2align 8"); a.raw(f".type {KN},@function"); a.raw(f"{KN}:")
    a.I("s_cmp_ge_u32 s2, 256")
    a.I("s_cbranch_scc1 L_end")
    if o.ts: a.I("s_memrealtime s[96:97]")
    a.I("s_load_dwordx8 s[4:11], s[0:1], 0")
    a.I("s_load_dwordx8 s[12:19], s[0:1], 32")
    a.I("s_load_dwordx8 s[20:27], s[0:1], 64")
    a.I("s_load_dwordx4 s[28:31], s[0:1], 96")
    a.I("v_lshrrev_b32 v6, 6, v0")
    a.I("v_and_b32 v1, 63, v0")
    a.I("v_readfirstlane_b32 s3, v6")
    a.I(f"s_and_b32 s{sRG1}, s2, 7")
    a.I(f"s_lshl_b32 s{sH}, s{sRG1}, 1")
    a.I(f"s_bfe_u32 s{sT}, s2, 0x10003")
    a.I(f"s_add_u32 s{sH}, s{sH}, s{sT}")
    a.I(f"s_bfe_u32 s{sB}, s2, 0x10004")
    a.I(f"s_lshr_b32 s{sS}, s2, 5")
    a.I(f"s_lshl_b32 s{sBH}, s{sB}, 4")
    a.I(f"s_add_u32 s{sBH}, s{sBH}, s{sH}")
    a.I(f"s_lshl_b32 s{sROW}, s{sBH}, 3")
    a.I(f"s_add_u32 s{sROW}, s{sROW}, s{sS}")
    a.I(f"s_lshl_b32 s{sT}, s{sROW}, 18")
    a.I(f"s_mul_i32 s{sU}, s3, {o.gran}")
    a.I(f"s_add_u32 s{sT}, s{sT}, s{sU}")
    a.I("v_lshlrev_b32 v7, 4, v1")
    a.I(f"v_add_u32 v2, s{sT}, v7")
    a.I("s_mov_b32 s34, 0x4000000"); a.I("s_mov_b32 s35, 0x20000")
    def proj_addr():
        a.I(f"s_lshl_b32 s{sI}, s{sB}, 3")
        a.I(f"s_add_u32 s{sI}, s{sI}, s{sS}")
        a.I(f"s_and_b32 s{sCG}, s{sI}, 3")
        a.I(f"s_lshr_b32 s{sRG}, s{sI}, 2")
        a.I(f"s_lshr_b32 s{sCG1}, s2, 3")
        a.I("v_lshrrev_b32 v23, 3, v1")
        a.I("v_and_b32 v25, 7, v1")
        a.I("v_lshlrev_b32 v24, 4, v25")
        a.I(f"s_mul_i32 s{sT}, s{sRG}, 112")
        a.I(f"s_lshl_b32 s{sU}, s3, 4")
        a.I(f"s_add_u32 s{sT}, s{sT}, s{sU}")
        a.I(f"v_lshl_add_u32 v21, v23, 1, s{sT}")
        a.I(f"s_lshl_b32 s{sT}, s{sH}, 9")
        a.I(f"s_lshl_b32 s{sU}, s{sCG}, 7")
        a.I(f"s_add_u32 s{sT}, s{sT}, s{sU}")
        a.I(f"s_lshl_b32 s{sU}, s{sCG1}, 7")
        a.I("s_cmp_ge_u32 s2, 224")
        a.I(f"s_cselect_b32 s{sU}, {OOB}, s{sU}")
        a.I("s_cmp_eq_u32 s3, 7")
        a.I(f"s_cselect_b32 s{sT}, {OOB}, s{sT}")
        a.I(f"s_cselect_b32 s{sU}, {OOB}, s{sU}")
        a.I("v_lshl_add_u32 v3, v21, 13, v24")
        a.I(f"v_add_u32 v3, s{sT}, v3")
        a.I(f"s_mul_i32 s{sT}, s{sRG1}, 56")
        a.I(f"s_lshl_b32 s{sCNT}, s3, 3")
        a.I(f"s_add_u32 s{sT}, s{sT}, s{sCNT}")
        a.I(f"v_add_u32 v22, s{sT}, v23")
        a.I("v_mul_u32_u24 v20, 0xe00, v22")
        a.I(f"v_add3_u32 v20, v20, v24, s{sU}")
        a.I("v_and_b32 v22, -2, v22")
        a.I(f"s_mov_b32 s{sM3}, 0xcccccccc"); a.I(f"s_mov_b32 s{sM3+1}, 0xcccccccc")
        a.I(f"v_cndmask_b32 v21, v21, v22, s[{sM3}:{sM3+1}]")
        a.I("v_and_b32 v22, 1, v1")
        a.I("v_mul_u32_u24 v22, 0x380, v22")
        a.I("v_lshl_add_u32 v21, v21, 1, v22")
        for d, n in ((42, 448 * 8192), (50, 448 * 3584), (62, 1792)):
            a.I(f"s_mov_b32 s{d}, {n}"); a.I(f"s_mov_b32 s{d+1}, 0x20000")
    if o.pre: proj_addr()
    a.I("s_waitcnt lgkmcnt(0)"); a.smem = False
    if o.ts: a.I(f"v_writelane_b32 v{VTS}, s96, 14")
    stamp(3)
    a.I("s_mov_b32 s32, s6"); a.I("s_mov_b32 s33, s7")
    NB0 = 64
    ACC = 236
    pool = list(range(NB0, ACC, 4))
    buf = {}
    hiwater = [0]
    def alloc(tag):
        r = pool.pop(0); buf[tag] = r; hiwater[0] = max(hiwater[0], len(buf)); return r
    def free(tag): pool.append(buf.pop(tag))
    last_so = [None]
    def set_so(v):
        if v == 0: return "0"
        if last_so[0] != v:
            a.I(f"s_mov_b32 s{sSO}, {v}"); last_so[0] = v
        return f"s{sSO}"
    def issue(tag):
        kind, i = tag
        r = alloc(tag)
        if kind in ("K", "V"):
            lpc = o.gran // 1024
            off = (i // lpc) * 8 * o.gran + (i % lpc) * 1024
            so = set_so(off & ~4095)
            sr = "s[32:35]" if kind == "K" else "s[36:39]"
            a.I(f"buffer_load_dwordx4 v[{r}:{r+3}], v2, {sr}, {so} offen offset:{off & 4095} {kvf}", tag)
        elif kind == "WQ":
            so = set_so(i * 8192)
            a.I(f"buffer_load_dwordx4 v[{r}:{r+3}], v3, s[40:43], {so} offen {o.pflags}", tag)
        elif kind == "W1":
            a.I(f"buffer_load_dwordx4 v[{r}:{r+3}], v20, s[48:51], 0 offen {o.pflags}", tag)
        elif kind == "WO":
            a.I(f"buffer_load_dwordx4 v[{r}:{r+3}], v4, s[44:47], 0 offen offset:{i*896} {wf}", tag)
        elif kind == "W2":
            a.I(f"buffer_load_dwordx4 v[{r}:{r+3}], v5, s[52:55], 0 offen {wf}", tag)
    stream = [("K", i) for i in range(32)] + [("V", i) for i in range(32)]
    tailw = [("W2", 0), ("WO", 0), ("WO", 1)]
    issued = set()
    nxt = [0]
    def flush_tailw():
        while tailw:
            t = tailw.pop(0); issue(t); issued.add(t)
    def slot(nowait=False):
        n = nxt[0]
        if n >= len(stream): return False
        if n >= D and not nowait: a.wait_vm(stream[n - D])
        issue(stream[n]); issued.add(stream[n]); nxt[0] += 1
        if o.wo_early >= 0 and n == len(stream) - 1 - o.wo_early: flush_tailw()
        return True
    def landed(tag): return tag not in a.vm and tag in issued
    for _ in range(o.init): slot(True)
    stamp(2)
    if not o.pre: proj_addr()
    a.I("s_mov_b32 s40, s10"); a.I("s_mov_b32 s41, s11")
    issue(("WQ", 0)); issue(("WQ", 1))
    a.I("s_mov_b32 s48, s16"); a.I("s_mov_b32 s49, s17")
    issue(("W1", 0))
    a.I("s_mov_b32 s60, s4"); a.I("s_mov_b32 s61, s5")
    a.I("buffer_load_dword v36, v21, s[60:63], 0 offen", "X")
    a.I(f"s_load_dword s{sEP}, s[30:31], {WS_EP}")
    for _ in range(o.init2): slot(True)
    stamp(2)
    a.I("v_lshrrev_b32 v6, 5, v1")
    a.I(f"s_mov_b32 s{sSELL}, 0x05040100")
    a.I(f"s_mov_b32 s{sSELH}, 0x07060302")
    a.I("v_lshrrev_b32 v12, 4, v1")
    a.I("v_bfe_u32 v13, v1, 3, 1")
    a.I("v_lshl_add_u32 v12, v13, 2, v12")
    a.I("v_lshl_add_u32 v11, v25, 3, v12")
    a.I(f"s_lshl_b32 s{sT}, s3, 8")
    a.I(f"v_lshl_add_u32 v34, v11, 2, s{sT}")
    a.I(f"s_lshl_b32 s{sT}, s3, 10")
    a.I(f"v_lshl_add_u32 v29, v11, 3, s{sT}")
    a.I("v_lshlrev_b32 v26, 4, v13")
    srd(a, 56, 30, WS_TS + 0x20000 if o.ts else WS_END)
    a.I(f"s_lshl_b32 s{sT}, s{sH}, 13")
    a.I(f"s_lshl_b32 s{sU}, s{sCG}, 9")
    a.I(f"s_add_u32 s{sT}, s{sT}, s{sU}")
    a.I(f"s_lshl_b32 s{sU}, s{sRG}, 11")
    a.I(f"s_add_u32 s{sT}, s{sT}, s{sU}")
    a.I(f"s_add_u32 s{sCG}, s{sT}, {WS_Q}")
    a.I(f"s_lshl_b32 s{sT}, s{sCG1}, 9")
    a.I(f"s_mul_i32 s{sU}, s{sRG1}, 14336")
    a.I(f"s_add_u32 s{sT}, s{sT}, s{sU}")
    a.I(f"s_add_u32 s{sT}, s{sT}, {WS_H}")
    a.I("s_cmp_ge_u32 s2, 224")
    a.I(f"s_cselect_b32 s{sT}, {OOB}, s{sT}")
    a.I("s_cmp_eq_u32 s3, 0")
    a.I(f"s_cselect_b32 s{sCG}, s{sCG}, s{sT}")
    a.I(f"s_mov_b32 s{sT}, 114688")
    a.I(f"s_cselect_b32 s{sT}, 0x20000, s{sT}")
    a.I("v_and_b32 v30, 31, v1")
    a.I("v_lshlrev_b32 v27, 3, v30")
    a.I("v_lshlrev_b32 v30, 4, v30")
    a.I(f"v_mul_lo_u32 v11, v6, s{sT}")
    a.I(f"v_add3_u32 v30, v30, v11, s{sCG}")
    a.I("v_lshrrev_b32 v11, 5, v0")
    a.I("v_lshl_add_u32 v27, v11, 11, v27")
    a.I("v_mov_b32 v11, 0")
    a.I(f"ds_write_b32 v11, v11 offset:{CN}")
    stamp(2)
    while nxt[0] < o.s_proj: slot()
    stamp(2)
    def tred8x2(b0, d0, b1, d1):
        for b in (b0, b1):
            for e in range(4): a.I(f"v_permlane16_swap_b32 v{b+2*e}, v{b+1+2*e}")
        for b in (b0, b1):
            for e in range(4): a.I(f"v_add_f32 v{b+2*e}, v{b+2*e}, v{b+1+2*e}")
        for b in (b0, b1):
            a.I(f"v_permlane32_swap_b32 v{b}, v{b+2}"); a.I(f"v_permlane32_swap_b32 v{b+4}, v{b+6}")
        for b in (b0, b1):
            a.I(f"v_add_f32 v{b}, v{b}, v{b+2}"); a.I(f"v_add_f32 v{b+4}, v{b+4}, v{b+6}")
        for b, d in ((b0, d0), (b1, d1)): a.I(dpp("v_add_f32", d, b, b, "row_ror:8", bm="0x3"))
        for b, d in ((b0, d0), (b1, d1)): a.I(dpp("v_add_f32", d, b + 4, b + 4, "row_ror:8", bm="0xc"))
    def pair_rows(tA, tB, spare):
        A = [buf[tA] + e for e in range(4)]; B = [buf[tB] + e for e in range(4)]
        out = []; sp = [spare]
        for e in range(4):
            t = sp.pop(0)
            a.I(f"v_perm_b32 v{t}, v{B[e]}, v{A[e]}, s{sSELL}")
            a.I(f"v_perm_b32 v{B[e]}, v{B[e]}, v{A[e]}, s{sSELH}")
            sp.append(A[e]); out += [t, B[e]]
        return out
    a.wait_vm("X")
    stamp(2)
    for k in range(4): a.I(f"v_mov_b32_dpp v{37+k}, v36 quad_perm:[{k},{k},{k},{k}] row_mask:0xf bank_mask:0xf")
    wq = pair_rows(("WQ", 0), ("WQ", 1), 8)
    for b in range(2):
        for c in range(8): a.I(f"v_dot2_f32_bf16 v{ACC+8*b+c}, v{wq[c]}, v{37+b}, 0")
    slot()
    a.I("v_bfe_u32 v41, v39, v26, 16"); a.I("v_bfe_u32 v43, v40, v26, 16")
    tred8x2(ACC, 16, ACC + 8, 17)
    a.I("v_lshlrev_b32 v42, 16, v41"); a.I("v_lshlrev_b32 v44, 16, v43")
    a.I(f"ds_write_b32 v34, v16 offset:{RP}")
    a.I(f"ds_write_b32 v34, v17 offset:{RP+2048}")
    free(("WQ", 0)); free(("WQ", 1))
    slot()
    r = buf[("W1", 0)]
    for b in range(2):
        for e in range(4):
            a.I(f"v_dot2_f32_bf16 v{ACC+8*b+2*e}, v{r+e}, v{41+2*b}, 0")
            a.I(f"v_dot2_f32_bf16 v{ACC+8*b+2*e+1}, v{r+e}, v{42+2*b}, 0")
    tred8x2(ACC, 18, ACC + 8, 19)
    a.I(f"ds_write_b32 v34, v18 offset:{RP+4096}")
    a.I(f"ds_write_b32 v34, v19 offset:{RP+6144}")
    free(("W1", 0))
    if o.preb: slot()
    a.wait_lg()
    a.I(f"s_mul_i32 s{sT}, s{sEP}, 0x9E3779B1")
    a.I(f"s_add_u32 s{sT}, s{sT}, 0x7F4A7C15")
    a.I(f"v_mov_b32 v32, s{sT}")
    stamp(2)
    a.I("s_barrier")
    stamp(2)
    a.I("s_cmp_ge_u32 s3, 2")
    a.I("s_cbranch_scc1 L_pjdone")
    for w in range(8): a.I(f"ds_read_b64 v[{36+2*w}:{37+2*w}], v27 offset:{RP + w*256}", ("s8", w))
    for lv in (1, 2, 4):
        for w in range(0, 8, 2*lv):
            if lv == 1: a.wait_lg(("s8", w + 1))
            for k in range(2): a.I(f"v_add_f32 v{36+2*w+k}, v{36+2*w+k}, v{36+2*(w+lv)+k}")
    a.I("v_mov_b32 v38, v37"); a.I("v_mov_b32 v37, v32"); a.I("v_mov_b32 v39, v32")
    a.I("buffer_store_dwordx4 v[36:39], v30, s[56:59], 0 offen sc1"); a.vm.pop()
    a.label("L_pjdone")
    stamp(1)
    def su_srd():
        srd(a, 36, 8, 64 << 20)
        srd(a, 44, 12, 4096 * 896)
        srd(a, 52, 20, 1792 * 896)
        srd(a, 64, 24, 896)
        srd(a, 68, 22, 896)
        srd(a, 72, 26, 1792)
        srd(a, 12, 18, 3584)
        a.I(f"s_mov_b32 s{sM4}, 0xaaaaaaaa"); a.I(f"s_mov_b32 s{sM4+1}, 0xaaaaaaaa")
    def su_unit():
        a.I(f"s_cmp_ge_u32 s{sI}, 7")
        a.I(f"s_cselect_b32 s{sT}, 1, 0")
        a.I(f"s_lshl_b32 s{sPR}, s{sH}, 1")
        a.I(f"s_add_u32 s{sPR}, s{sPR}, s{sT}")
        a.I(f"s_mul_i32 s{sT}, s{sT}, 7")
        a.I(f"s_sub_u32 s{sCGW}, s{sI}, s{sT}")
        a.I(f"s_lshl_b32 s{sT}, s{sPR}, 3")
        a.I(f"s_add_u32 s{sT}, s{sT}, s3")
        a.I(f"s_mul_i32 s{sT}, s{sT}, {16*896}")
        a.I(f"s_lshl_b32 s{sU}, s{sCGW}, 7")
        a.I(f"s_add_u32 s{sT}, s{sT}, s{sU}")
        a.I(f"s_cmp_ge_u32 s{sI}, 14")
        a.I(f"s_cselect_b32 s{sT}, {OOB}, s{sT}")
        a.I(f"s_cselect_b32 s{sU}, {OOB}, s{sU}")
        a.I("v_mul_u32_u24 v4, 0x700, v23")
        a.I(f"v_add3_u32 v4, v4, v24, s{sT}")
        a.I(f"s_mul_i32 s{sT}, s{sPR}, 56")
        a.I(f"s_lshl_b32 s{sCNT}, s3, 3")
        a.I(f"s_add_u32 s{sT}, s{sT}, s{sCNT}")
        a.I(f"v_add_u32 v22, s{sT}, v23")
        a.I("s_cmp_eq_u32 s3, 7")
        a.I(f"s_cselect_b32 s{sU}, {OOB}, s{sU}")
        a.I("v_mul_u32_u24 v5, 0x380, v22")
        a.I(f"v_add3_u32 v5, v5, v24, s{sU}")
        a.I(f"v_add_u32 v22, s{sT}, v25")
        a.I("v_lshlrev_b32 v35, 1, v22")
        a.I(f"s_and_b32 s{sU}, s{sU}, {OOB}")
        a.I(f"s_add_u32 s{sU}, s{sU}, {WS_H}")
        a.I("v_lshrrev_b32 v26, 1, v22")
        a.I("v_mul_u32_u24 v63, 0x3800, v23")
        a.I("v_lshl_add_u32 v63, v26, 4, v63")
        a.I(f"v_add_u32 v63, s{sU}, v63")
        a.I(f"v_mov_b32 v31, s{sCNT}")
    def su_tail():
        a.I(f"s_lshl_b32 s{sT}, s{sBH}, 14")
        a.I(f"s_lshl_b32 s{sU}, s{sS}, 4")
        a.I(f"s_add_u32 s{sT}, s{sT}, s{sU}")
        a.I("v_and_b32 v20, 3, v0")
        a.I("v_cmp_eq_u32 vcc, 0, v20")
        a.I(f"v_lshl_add_u32 v60, v0, 5, s{sT}")
        a.I(f"v_mov_b32 v61, {OOB}")
        a.I("v_cndmask_b32 v60, v61, v60, vcc")
        a.I("v_lshrrev_b32 v59, 2, v0")
        a.I("v_lshrrev_b32 v58, 3, v59")
        a.I("v_lshlrev_b32 v58, 12, v58")
        a.I("v_and_b32 v62, 7, v59")
        a.I("v_lshl_add_u32 v58, v62, 4, v58")
        a.I(f"s_lshl_b32 s{sT}, s{sCGW}, 16")
        a.I(f"s_lshl_b32 s{sU}, s{sPR}, 7")
        a.I(f"s_add_u32 s{sT}, s{sT}, s{sU}")
        a.I(f"v_add_u32 v58, s{sT}, v58")
        a.I("v_cndmask_b32 v58, v61, v58, vcc")
        a.I("v_lshlrev_b32 v59, 3, v59")
        a.I("v_lshl_add_u32 v59, v20, 11, v59")
        a.I(f"s_lshl_b32 s{sT}, s{sPR}, 13")
        a.I(f"s_lshl_b32 s{sU}, s3, 10")
        a.I(f"s_add_u32 s{sT}, s{sT}, s{sU}")
        a.I(f"v_add_u32 v61, s{sT}, v7")
        a.I("v_and_b32 v27, 31, v1")
        a.I("v_lshlrev_b32 v27, 4, v27")
        a.I("v_lshlrev_b32 v28, 1, v27")
        a.I("v_lshl_add_u32 v28, v6, 4, v28")
        a.I(f"v_add_u32 v28, s{sU}, v28")
    def su_task():
        a.I(f"s_and_b32 s{sT}, s{sI}, 1")
        a.I(f"s_lshl_b32 s{sU}, s{sH}, 1")
        a.I(f"s_add_u32 s{sT}, s{sT}, s{sU}")
        a.I(f"s_lshl_b32 s{sT}, s{sT}, 2")
        a.I(f"s_and_b32 s{sU}, s3, 3")
        a.I(f"s_add_u32 s{sTASK}, s{sT}, s{sU}")
        a.I(f"s_cmp_ge_u32 s{sI}, 14")
        a.I(f"s_cselect_b32 s{sRED}, 56, 0")
        a.I("s_cmp_ge_u32 s3, 4")
        a.I(f"s_cselect_b32 s{sRED}, 0, s{sRED}")
        a.I(f"s_cmp_ge_u32 s{sTASK}, 112")
        a.I(f"s_cselect_b32 s{sRED}, 0, s{sRED}")
        a.I(f"s_lshl_b32 s{sT}, s{sTASK}, 12")
        a.I(f"v_add_u32 v62, s{sT}, v7")
        a.I(f"s_bfe_u32 s{sCG}, s{sTASK}, 0x10003")
        a.I(f"s_mul_i32 s{sCG}, s{sCG}, 896")
        a.I(f"s_lshr_b32 s{sU}, s{sTASK}, 4")
        a.I(f"s_lshl_b32 s{sU}, s{sU}, 7")
        a.I(f"s_and_b32 s{sCNT}, s{sTASK}, 7")
        a.I(f"s_lshl_b32 s{sCNT}, s{sCNT}, 4")
        a.I(f"s_add_u32 s{sRG}, s{sU}, s{sCNT}")
        a.I("v_lshlrev_b32 v33, 1, v25")
        a.I(f"s_add_u32 s{sT}, s{sCG}, s{sRG}")
        a.I("v_and_b32 v57, 0x39, v1")
        a.I("v_cmp_eq_u32 vcc, 0, v57")
        a.I(f"v_add_u32 v26, s{sT}, v33")
        a.I(f"v_mov_b32 v57, {OOB}")
        a.I("v_cndmask_b32 v57, v57, v26, vcc")
        a.I(f"v_cmp_gt_u32 vcc, s{sRED}, v1")
        a.I(f"v_mov_b32 v56, {OOB}")
        a.I("v_cndmask_b32 v56, v56, v7, vcc")
    for f in (su_srd, su_unit, su_tail, su_task):
        slot(); f()
    def poll_check(name, regs, mask, reissue, sleep=2):
        a.I(f"s_mov_b32 s{sCNT}, {SPIN}")
        a.label(f"L_{name}chk")
        a.I(f"v_cmp_ne_u32 vcc, v{regs[0]}, v32")
        for r in regs[1:]:
            a.I(f"v_cmp_ne_u32 s[98:99], v{r}, v32")
            a.I("s_or_b64 vcc, vcc, s[98:99]")
        a.I("s_cmp_lg_u32 vcc_lo, 0" if mask == "lo" else "s_cmp_lg_u64 vcc, 0")
        a.I(f"s_cbranch_scc0 L_{name}ok")
        a.I(f"s_sub_u32 s{sCNT}, s{sCNT}, 1")
        a.I(f"s_cbranch_scc1 L_{name}ok")
        if sleep: a.I(f"s_sleep {sleep}")
        n0 = len(a.vm)
        reissue()
        a.vm = a.vm[:n0]
        a.I("s_waitcnt vmcnt(0)")
        a.I(f"s_branch L_{name}chk")
        a.label(f"L_{name}ok")
        if o.ts:
            a.I(f"s_sub_u32 s98, {SPIN}, s{sCNT}")
            a.I(f"v_writelane_b32 v{VTS}, s98, {dict(q=10, h=11, ml=12)[name]}")
    def red45_pk(x, y, ror=False):
        a.I(f"v_permlane16_swap_b32 v{x}, v{y}")
        a.I(f"v_add_f32 v{x}, v{x}, v{y}")
        if ror: a.I(dpp("v_add_f32", x, x, x, "row_ror:8"))
        a.I(f"v_mov_b32 v{y}, v{x}")
        a.I(f"v_permlane32_swap_b32 v{x}, v{y}")
        a.I(f"v_add_f32 v{x}, v{x}, v{y}")
        a.I(f"v_mov_b32 v{y}, v{x}")
        a.I(f"v_permlane16_swap_b32 v{x}, v{y}")
        a.I(f"v_cvt_pk_bf16_f32 v{x}, v{x}, v{y}")
    a.I(f"s_lshl_b32 s{sW}, s{sBH}, 13")
    a.I(f"s_add_u32 s{sW}, s{sW}, {WS_Q}")
    a.I("v_lshrrev_b32 v22, 4, v1")
    a.I("v_lshlrev_b32 v22, 11, v22")
    a.I("v_and_b32 v21, 15, v1")
    a.I("v_lshlrev_b32 v21, 2, v21")
    a.I("v_lshl_add_u32 v21, v31, 3, v21")
    a.I("v_lshl_add_u32 v22, v21, 2, v22")
    while nxt[0] < o.s_poll: slot()
    qp = lambda tag=None: a.I(f"buffer_load_dwordx4 v[8:11], v22, s[56:59], s{sW} offen sc1", tag)
    qp("QP")
    for _ in range(D): slot()
    a.wait_vm("QP")
    poll_check("q", [9, 11], -1, qp)
    red45_pk(8, 10)
    a.I(f"ds_write_b32 v21, v8 offset:{QS}")
    slot()
    a.wait_lg()
    a.I("s_barrier")
    stamp(1)
    a.I(f"ds_read_b128 v[16:19], v27 offset:{QS}", "q")
    slot()
    a.wait_lg()
    lvl = {}
    tfree = [20, 21, 22, 23, 26, 27, 8, 9, 10, 11, 12, 13]
    def merge(level, A, B):
        if level == 0:
            a.I(f"v_permlane16_swap_b32 v{A}, v{B}")
            a.I(f"v_add_f32 v{A}, v{A}, v{B}")
            tfree.append(B); return A
        if level in (1, 2):
            R = tfree.pop(0)
            if level == 1:
                a.I(dpp("v_add_f32", R, A, A, "row_ror:8", bm="0x3"))
                a.I(dpp("v_add_f32", R, B, B, "row_ror:8", bm="0xc"))
            else:
                a.I(dpp("v_add_f32", R, A, A, "row_shl:4", bm="0x5"))
                a.I(dpp("v_add_f32", R, B, B, "row_shr:4", bm="0xa"))
            tfree.extend([A, B]); return R
        q = "quad_perm:[2,3,0,1]" if level == 3 else "quad_perm:[1,0,3,2]"
        m = f"s[{sM3}:{sM3+1}]" if level == 3 else f"s[{sM4}:{sM4+1}]"
        a.I(dpp("v_add_f32", A, A, A, q))
        a.I(dpp("v_add_f32", B, B, B, q))
        a.I(f"v_cndmask_b32 v{A}, v{A}, v{B}, {m}")
        tfree.append(B); return A
    def kcons(i):
        a.wait_vm(("K", i))
        r = buf[("K", i)]
        t = tfree.pop(0)
        a.I(f"v_dot2_f32_bf16 v{t}, v{r}, v16, 0")
        for e in range(1, 4): a.I(f"v_dot2_f32_bf16 v{t}, v{r+e}, v{16+e}, v{t}")
        free(("K", i))
        L = 0
        while L in lvl:
            t = merge(L, lvl.pop(L), t); L += 1
        lvl[L] = t
    kd = 0
    while kd < 32:
        c = 0
        while kd < 32 and c < o.kps and landed(("K", kd)):
            kcons(kd); kd += 1; c += 1
        if kd < 32: slot()
    vS = lvl[5]
    a.I(f"v_cvt_pk_bf16_f32 v{vS}, v{vS}, v{vS}")
    a.I(f"v_and_b32 v30, 0xffff0000, v{vS}")
    a.I("v_mov_b32 v20, v30")
    wave_reduce63(a, "v_max_f32", 20)
    a.I(f"v_readlane_b32 s{sT}, v20, 63")
    a.I("v_bfrev_b32 v22, v1")
    a.I("v_bfe_u32 v22, v22, 27, 5")
    a.I(f"v_mov_b32 v34, s{sT}")
    a.I("v_lshlrev_b32 v22, 2, v22")
    a.I(f"s_lshl_b32 s{sT}, s3, 8")
    a.I(f"v_lshl_add_u32 v23, v6, 7, s{sT}")
    a.I("v_add_u32 v22, v22, v23")
    a.I("v_sub_f32 v20, v30, v34")
    a.I(f"v_mul_f32 v20, {hex(f2u(C_SCALE))}, v20")
    a.I("v_exp_f32 v20, v20")
    a.I(f"ds_write_b32 v22, v20 offset:{PS}")
    a.I("v_mov_b32 v21, v20")
    PB = [16, 24]
    a.I(f"ds_read_b128 v[16:19], v23 offset:{PS}", ("p", 0))
    slot()
    stamp(1)
    wave_reduce63(a, "v_add_f32", 21)
    a.I(f"v_readlane_b32 s{sT}, v21, 63")
    a.I("v_mov_b32 v40, v34")
    a.I("v_mov_b32 v21, 0")
    a.I(f"v_mov_b32 v41, s{sT}")
    a.I("v_mov_b32 v20, 1")
    a.I(f"s_getreg_b32 s{sXCC}, hwreg(HW_REG_XCC_ID)")
    a.I(f"s_and_b32 s{sXCC}, s{sXCC}, 15")
    if o.fakex: a.I(f"s_lshr_b32 s{sXCC}, s2, 5")
    a.I("s_mov_b64 exec, 1")
    a.I(f"ds_write_b64 v31, v[40:41] offset:{MX}")
    a.I(f"ds_add_rtn_u32 v20, v21, v20 offset:{CN}")
    a.I("s_mov_b64 exec, -1")
    slot()
    a.wait_lg()
    a.I(f"v_readfirstlane_b32 s{sT}, v20")
    a.I(f"s_cmp_lg_u32 s{sT}, 7")
    a.I("s_cbranch_scc1 L_noml")
    a.I("v_and_b32 v22, 7, v1")
    a.I("v_lshlrev_b32 v22, 3, v22")
    a.I(f"ds_read_b64 v[40:41], v22 offset:{MX}")
    a.I("v_cmp_gt_u32 vcc, 2, v1")
    a.I(f"v_mov_b32 v22, {OOB}")
    a.I("v_cndmask_b32 v22, v22, v7, vcc")
    a.I(f"v_mov_b32 v20, s{sXCC}")
    a.I(f"s_lshl_b32 s{sT}, s{sROW}, 7")
    a.I(f"s_add_u32 s{sT}, s{sT}, {WS_ML}")
    a.wait_lg()
    a.I("v_mov_b32 v43, v40")
    for c in X8: a.I(dpp("v_max_f32", 43, 43, 43, c))
    a.I("v_sub_f32 v40, v40, v43")
    a.I(f"v_mul_f32 v40, {hex(f2u(C_SCALE))}, v40")
    a.I("v_exp_f32 v40, v40")
    a.I("v_mul_f32 v42, v41, v40")
    for c in X8: a.I(dpp("v_add_f32", 42, 42, 42, c))
    a.I(f"v_cndmask_b32 v40, v43, v20, s[{sM4}:{sM4+1}]"); a.I("v_mov_b32 v41, v32"); a.I("v_mov_b32 v43, v32")
    a.I(f"buffer_store_dwordx4 v[40:43], v22, s[56:59], s{sT} offen sc1"); a.vm.pop()
    a.label("L_noml")
    def vcons(i):
        if i % 4 == 0:
            c = i // 4
            if c + 1 < 8:
                nb = PB[(c + 1) & 1]
                a.I(f"ds_read_b128 v[{nb}:{nb+3}], v23 offset:{PS + (c+1)*16}", ("p", c + 1))
            a.wait_lg(("p", c))
        a.wait_vm(("V", i))
        r = buf[("V", i)]
        p = PB[(i // 4) & 1] + (i % 4)
        for e in range(4):
            a.I(f"v_lshlrev_b32 v20, 16, v{r+e}")
            a.I(f"v_and_b32 v21, 0xffff0000, v{r+e}")
            op = "v_mul_f32" if i == 0 else "v_fmac_f32"
            a.I(f"{op} v{8+2*e}, v20, v{p}")
            a.I(f"{op} v{9+2*e}, v21, v{p}")
        free(("V", i))
    vd = 0
    state = [0]
    def ml_issue(tag=None):
        a.I(f"buffer_load_dwordx4 v[36:39], v22, s[56:59], s{sW} offen sc1", tag)
    def hp(tag=None):
        a.I("buffer_load_dwordx4 v[44:47], v63, s[56:59], 0 offen sc1")
        a.I(f"buffer_load_dwordx4 v[48:51], v63, s[56:59], s{sW} offen sc1", tag)
    G = {}
    def side():
        st = state[0]
        if st == 0 and nxt[0] >= o.s_h:
            a.I(f"s_mov_b32 s{sW}, 114688")
            a.I("buffer_load_ushort v35, v35, s[12:15], 0 offen")
            hp("HP"); state[0] = 1
        elif st == 1 and "HP" not in a.vm:
            a.I(f"s_cmp_ge_u32 s{sI}, 14")
            a.I("s_cbranch_scc1 L_hok")
            a.I("s_cmp_eq_u32 s3, 7")
            a.I("s_cbranch_scc1 L_hok")
            poll_check("h", [45, 47, 49, 51], -1, hp)
            a.I("v_lshlrev_b32 v35, 16, v35")
            a.I(f"v_cndmask_b32 v20, v44, v46, s[{sM4}:{sM4+1}]")
            a.I(f"v_cndmask_b32 v48, v48, v50, s[{sM4}:{sM4+1}]")
            red45_pk(20, 48, ror=True)
            a.I("v_lshlrev_b32 v21, 16, v20"); a.I("v_and_b32 v22, 0xffff0000, v20")
            a.I("v_add_f32 v21, v35, v21"); a.I("v_add_f32 v22, v35, v22")
            a.I("v_cvt_pk_bf16_f32 v20, v21, v22")
            a.I("v_lshlrev_b32 v21, 16, v20"); a.I("v_and_b32 v22, 0xffff0000, v20")
            a.I("v_max_f32 v21, 0, v21"); a.I("v_max_f32 v22, 0, v22")
            a.I("v_mul_f32 v21, v21, v21"); a.I("v_mul_f32 v22, v22, v22")
            a.I("v_cvt_pk_bf16_f32 v44, v21, v22")
            a.I("v_lshrrev_b32 v45, 3, v1")
            a.I("v_lshlrev_b32 v45, 2, v45")
            a.I("ds_bpermute_b32 v35, v45, v44", "hb")
            G["x"], G["g"] = alloc("GX"), alloc("GG")
            a.I(f"s_cmp_eq_u32 s{sRED}, 0")
            a.I("s_cbranch_scc1 L_nog")
            n0 = len(a.vm)
            a.I(f"buffer_load_dwordx4 v[{G['x']}:{G['x']+3}], v56, s[60:63], s{sCG} offen")
            a.I(f"buffer_load_dwordx4 v[{G['g']}:{G['g']+3}], v56, s[64:67], 0 offen")
            a.I(f"buffer_load_ushort v33, v33, s[68:71], s{sRG} offen")
            a.vm = a.vm[:n0]
            a.label("L_nog", nop=False)
            state[0] = 2
        elif st == 2 and nxt[0] >= o.s_ml:
            a.I("v_lshrrev_b32 v30, 4, v1")
            a.I(f"v_xor_b32 v30, s{sB}, v30")
            a.I("v_lshlrev_b32 v30, 14, v30")
            a.I("v_bfe_u32 v22, v1, 1, 3")
            a.I("v_lshl_add_u32 v30, v22, 7, v30")
            a.I("v_and_b32 v22, 1, v1")
            a.I("v_lshl_add_u32 v30, v22, 4, v30")
            a.I("v_cmp_gt_u32 vcc, 32, v1")
            a.I(f"v_mov_b32 v22, {OOB}")
            a.I("v_cndmask_b32 v22, v22, v30, vcc")
            a.I(f"s_lshl_b32 s{sW}, s{sH}, 10")
            a.I(f"s_add_u32 s{sW}, s{sW}, {WS_ML}")
            ml_issue("MLP")
            state[0] = 3
        elif st == 3 and "MLP" not in a.vm:
            poll_check("ml", [37, 39], "lo", ml_issue)
            a.I(f"v_cmp_ne_u32 vcc, s{sXCC}, v36")
            a.I("v_mov_b32 v37, v36")
            a.I(f"s_and_b32 s{sXCC}, vcc_lo, 0xaaaaaaaa")
            for cc in ("quad_perm:[2,3,0,1]", "row_ror:4", "row_ror:8"):
                a.I(dpp("v_max_f32", 37, 37, 37, cc))
            a.I("v_sub_f32 v36, v36, v37")
            a.I("v_sub_f32 v39, v34, v37")
            a.I(f"v_mul_f32 v36, {hex(f2u(C_SCALE))}, v36")
            a.I(f"v_mul_f32 v39, {hex(f2u(C_SCALE))}, v39")
            a.I("v_exp_f32 v36, v36")
            a.I("v_exp_f32 v39, v39")
            a.I("v_mul_f32 v38, v38, v36")
            for cc in ("quad_perm:[2,3,0,1]", "row_ror:4", "row_ror:8"):
                a.I(dpp("v_add_f32", 38, 38, 38, cc))
            a.I("v_rcp_f32 v38, v38")
            a.I("v_mul_f32 v38, v38, v39")
            a.I(f"v_readfirstlane_b32 s{sW}, v38")
            a.wait_lg("hb")
            a.I("v_and_b32 v44, 0xffff, v35"); a.I("v_lshlrev_b32 v45, 16, v35")
            a.I("v_lshrrev_b32 v46, 16, v35"); a.I("v_and_b32 v47, 0xffff0000, v35")
            state[0] = 4
    while vd < 32:
        c = 0
        while vd < 32 and c < o.vps and (landed(("V", vd)) or nxt[0] >= len(stream)):
            vcons(vd); vd += 1; c += 1
            if o.wo_early < 0 and vd == 28 - o.wo_early: flush_tailw()
        side()
        slot()
    assert state[0] == 4
    stamp(1)
    for k in range(4): a.I(f"v_permlane32_swap_b32 v{8+k}, v{12+k}")
    for k in range(4): a.I(f"v_add_f32 v{8+k}, v{8+k}, v{12+k}")
    for k in range(4): a.I(f"v_mul_f32 v{8+k}, s{sW}, v{8+k}")
    a.I(f"ds_write_b128 v28, v[8:11] offset:{OA}")
    a.I(f"s_mov_b32 s{sT}, {WS_O}")
    a.I(f"s_mov_b32 s{sU}, {WS_O + 0x40000}")
    a.I(f"s_cmp_lg_u32 s{sXCC}, 0")
    a.wait_lg()
    a.I("s_barrier")
    def reduce8(base):
        a.I(f"ds_read_b64 v[36:37], v59 offset:{base}")
        a.I(f"ds_read_b64 v[40:41], v59 offset:{base+1024}")
        a.I("v_mov_b32 v39, v32")
        a.wait_lg()
        a.I("v_add_f32 v36, v36, v40"); a.I("v_add_f32 v38, v37, v41")
        a.I("v_mov_b32 v37, v32")
        for c in ("quad_perm:[1,0,3,2]", "quad_perm:[2,3,0,1]"):
            a.I(dpp("v_add_f32", 36, 36, 36, c)); a.I(dpp("v_add_f32", 38, 38, 38, c))
    reduce8(OA)
    a.I("s_cbranch_scc1 L_oslow")
    a.I(f"buffer_store_dwordx4 v[36:39], v60, s[56:59], s{sT} offen"); a.vm.pop()
    a.I("s_branch L_ost")
    a.label("L_oslow", nop=False)
    a.I(f"buffer_store_dwordx4 v[36:39], v60, s[56:59], s{sT} offen sc1"); a.vm.pop()
    a.label("L_ost", nop=False)
    stamp(1)
    a.I(f"s_cmp_ge_u32 s{sI}, 14")
    a.I("s_cbranch_scc1 L_red")
    def opoll():
        a.I(f"buffer_load_dwordx4 v[16:19], v61, s[56:59], s{sT} offen sc1")
        a.I(f"buffer_load_dwordx4 v[20:23], v61, s[56:59], s{sU} offen sc1")
    if o.oearly == 2:
        opoll(); a.I("s_waitcnt vmcnt(2)")
    else:
        a.I("s_waitcnt vmcnt(0)")
        if o.oearly: opoll()
    a.vm = []
    r = buf[("W2", 0)]
    for b in range(2):
        for e in range(4):
            a.I(f"v_dot2_f32_bf16 v{ACC+8*b+2*e}, v{r+e}, v{44+2*b}, 0")
            a.I(f"v_dot2_f32_bf16 v{ACC+8*b+2*e+1}, v{r+e}, v{45+2*b}, 0")
    wp = pair_rows(("WO", 0), ("WO", 1), 30)
    tred8x2(ACC, 49, ACC + 8, 51)
    a.I(f"s_mov_b32 s{sCNT}, {SPIN}")
    if o.oearly: a.I("s_branch L_ochk")
    a.label("L_opoll", nop=False)
    opoll()
    a.I(f"s_sub_u32 s{sCNT}, s{sCNT}, 1")
    a.I("s_cbranch_scc1 L_ook")
    a.label("L_ochk", nop=False)
    a.I("s_waitcnt vmcnt(0)")
    a.I("v_cmp_ne_u32 vcc, v17, v32")
    a.I("v_cmp_ne_u32 s[98:99], v19, v32")
    a.I("v_cmp_ne_u32 s[4:5], v21, v32")
    a.I("v_cmp_ne_u32 s[6:7], v23, v32")
    a.I("s_or_b64 vcc, vcc, s[98:99]")
    a.I("s_or_b64 s[4:5], s[4:5], s[6:7]")
    a.I("s_or_b64 vcc, vcc, s[4:5]")
    a.I("s_cbranch_scc1 L_opoll")
    a.label("L_ook", nop=False)
    a.vm = []
    stamp(1)
    for c in X8:
        for r in (16, 18, 20, 22): a.I(dpp("v_add_f32", r, r, r, c))
    a.I("v_cvt_pk_bf16_f32 v16, v16, v18")
    a.I("v_cvt_pk_bf16_f32 v20, v20, v22")
    for c in range(8): a.I(f"v_dot2_f32_bf16 v{ACC+c}, v{wp[c]}, v16, 0")
    for c in range(8): a.I(f"v_dot2_f32_bf16 v{ACC+8+c}, v{wp[c]}, v20, 0")
    tred8x2(ACC, 48, ACC + 8, 50)
    a.I(f"ds_write_b64 v29, v[48:49] offset:{OP}")
    a.I(f"ds_write_b64 v29, v[50:51] offset:{OP+512}")
    a.I(f"s_mov_b32 s{sT}, {WS_P}")
    a.wait_lg()
    a.I("s_barrier")
    reduce8(OP)
    a.I(f"buffer_store_dwordx4 v[36:39], v58, s[56:59], s{sT} offen sc1")
    stamp(1)
    a.I("s_branch L_fin")
    a.label("L_red", nop=False)
    if o.ts == 1:
        nst[0] -= 2; stamp(1); stamp(1)
    a.I(f"s_cmp_eq_u32 s{sRED}, 0")
    a.I("s_cbranch_scc1 L_fin")
    gx, gg = G["x"], G["g"]
    for e in range(4):
        a.I(f"v_lshlrev_b32 v20, 16, v{gx+e}"); a.I(f"v_and_b32 v21, 0xffff0000, v{gx+e}")
        a.I(f"v_lshlrev_b32 v22, 16, v{gg+e}"); a.I(f"v_and_b32 v26, 0xffff0000, v{gg+e}")
        a.I("v_mul_f32 v20, v20, v22"); a.I("v_mul_f32 v21, v21, v26")
        a.I(f"v_cvt_pk_bf16_f32 v{8+e}, v20, v21")
    for e in range(4):
        a.I(f"v_lshlrev_b32 v20, 16, v{8+e}"); a.I(f"v_and_b32 v21, 0xffff0000, v{8+e}")
        a.I(f"v_add_f32 v{8+e}, v20, v21")
    a.I("v_add_f32 v8, v8, v9"); a.I("v_add_f32 v10, v10, v11"); a.I("v_add_f32 v8, v8, v10")
    wave_reduce63(a, "v_add_f32", 8)
    a.I("v_cvt_pk_bf16_f32 v8, v8, v8")
    a.I("v_and_b32 v8, 0xffff0000, v8")
    a.I(f"v_mul_f32 v8, {hex(f2u(-1.4426950408889634))}, v8")
    a.I("v_exp_f32 v8, v8")
    a.I("v_add_f32 v8, 1.0, v8")
    a.I("v_rcp_f32 v8, v8")
    a.I("v_cvt_pk_bf16_f32 v8, v8, v8")
    a.I("v_and_b32 v8, 0xffff0000, v8")
    a.I("v_sub_f32 v9, 1.0, v8")
    a.I("v_cvt_pk_bf16_f32 v9, v9, v9")
    a.I("v_and_b32 v9, 0xffff0000, v9")
    a.I(f"v_readlane_b32 s{sT}, v8, 63")
    a.I(f"v_readlane_b32 s{sU}, v9, 63")
    a.I("v_and_b32 v10, 16, v1")
    a.I("v_cmp_ne_u32 vcc, 0, v10")
    a.I("v_lshlrev_b32 v33, 16, v33")
    a.I(f"v_mov_b32 v56, s{sT}")
    a.I(f"v_mov_b32 v8, s{sU}")
    a.I("v_cndmask_b32 v33, 0, v33, vcc")
    a.I("v_cndmask_b32 v56, v56, v8, vcc")
    a.I(f"s_mov_b32 s{sT}, {WS_P}")
    a.I(f"s_mov_b32 s{sCNT}, {SPIN}")
    for j in range(4): a.I(f"s_mov_b64 s[{4+2*j}:{5+2*j}], -1")
    a.label("L_rpoll", nop=False)
    for j in range(4):
        a.I(f"s_mov_b64 exec, s[{4+2*j}:{5+2*j}]")
        a.I(f"s_cbranch_execz L_rp{j}")
        a.I(f"buffer_load_dwordx4 v[{8+4*j}:{11+4*j}], v62, s[56:59], s{sT} offen offset:{1024*j} sc1")
        a.label(f"L_rp{j}", nop=False)
    a.I("s_mov_b64 exec, -1")
    a.I("s_waitcnt vmcnt(0)"); a.vm = []
    for j in range(4):
        a.I(f"v_cmp_ne_u32 s[{4+2*j}:{5+2*j}], v{9+4*j}, v32")
        a.I(f"v_cmp_ne_u32 s[{16+2*j}:{17+2*j}], v{11+4*j}, v32")
    for j in range(4): a.I(f"s_or_b64 s[{4+2*j}:{5+2*j}], s[{4+2*j}:{5+2*j}], s[{16+2*j}:{17+2*j}]")
    a.I("s_or_b64 vcc, s[4:5], s[6:7]")
    a.I("s_or_b64 s[98:99], s[8:9], s[10:11]")
    a.I("s_or_b64 vcc, vcc, s[98:99]")
    a.I("s_cbranch_scc0 L_rok")
    if o.rsleep: a.I(f"s_sleep {o.rsleep}")
    a.I(f"s_sub_u32 s{sCNT}, s{sCNT}, 1")
    a.I("s_cbranch_scc0 L_rpoll")
    a.label("L_rok", nop=False)
    a.I("v_add_f32 v8, v8, v12"); a.I("v_add_f32 v10, v10, v14"); a.I("v_add_f32 v16, v16, v20"); a.I("v_add_f32 v18, v18, v22")
    a.I("v_add_f32 v8, v8, v16"); a.I("v_add_f32 v10, v10, v18")
    a.I("v_permlane16_swap_b32 v8, v10")
    a.I("v_add_f32 v8, v8, v10")
    a.I(dpp("v_add_f32", 8, 8, 8, "row_ror:8"))
    a.I("v_mov_b32 v9, v8")
    a.I("v_permlane32_swap_b32 v8, v9")
    a.I("v_add_f32 v8, v8, v9")
    a.I("v_cvt_pk_bf16_f32 v8, v8, v8")
    a.I("v_and_b32 v8, 0xffff0000, v8")
    a.I("v_add_f32 v8, v8, v33")
    a.I("v_cvt_pk_bf16_f32 v8, v8, v8")
    a.I("v_and_b32 v8, 0xffff0000, v8")
    a.I("v_mul_f32 v8, v8, v56")
    a.I("v_cvt_pk_bf16_f32 v8, v8, v8")
    a.I("v_and_b32 v8, 0xffff0000, v8")
    a.I("v_mov_b32 v9, v8")
    a.I("v_permlane16_swap_b32 v8, v9")
    a.I("v_add_f32 v8, v8, v9")
    a.I("v_mov_b32_dpp v9, v8 quad_perm:[1,0,3,2] row_mask:0xf bank_mask:0xf")
    a.I("v_cvt_pk_bf16_f32 v8, v8, v9")
    a.I("buffer_store_dword v8, v57, s[72:75], 0 offen")
    a.I(f"s_cmp_lg_u32 s{sTASK}, 0")
    a.I("s_cbranch_scc1 L_fin")
    a.I("v_mov_b32 v9, 0")
    a.I("s_mov_b64 exec, 1")
    a.I(f"buffer_store_dword v32, v9, s[56:59], 0 offen offset:{WS_EP} sc1")
    a.I("s_mov_b64 exec, -1")
    a.label("L_fin", nop=bool(o.ts))
    if o.ts:
        stamp(3)
        a.I("v_cmp_gt_u32 vcc, 16, v1")
        a.I(f"v_mov_b32 v21, {OOB}")
        a.I("v_lshlrev_b32 v20, 2, v1")
        a.I("v_cndmask_b32 v20, v21, v20, vcc")
        a.I("s_lshl_b32 s98, s2, 3"); a.I("s_add_u32 s98, s98, s3"); a.I("s_lshl_b32 s98, s98, 6")
        a.I(f"s_add_u32 s98, s98, {WS_TS}")
        a.I(f"buffer_store_dword v{VTS}, v20, s[56:59], s98 offen")
    a.label("L_end", nop=False)
    a.I("s_endpgm")
    print("buffer high-water:", hiwater[0], file=sys.stderr)

def main():
    ap = argparse.ArgumentParser()
    ap.add_argument("-o", default="k.s")
    ap.add_argument("--kvflags", default="nt")
    ap.add_argument("--wflags", default="nt")
    ap.add_argument("--pflags", default="nt")
    ap.add_argument("--depth", type=int, default=4)
    ap.add_argument("--gran", type=int, default=4096)
    ap.add_argument("--pre", type=int, default=1)
    ap.add_argument("--preb", type=int, default=1)
    ap.add_argument("--init", type=int, default=4)
    ap.add_argument("--init2", type=int, default=0)
    ap.add_argument("--s_proj", type=int, default=8)
    ap.add_argument("--s_poll", type=int, default=17)
    ap.add_argument("--s_h", type=int, default=42)
    ap.add_argument("--s_ml", type=int, default=52)
    ap.add_argument("--wo_early", type=int, default=-1)
    ap.add_argument("--kps", type=int, default=3)
    ap.add_argument("--vps", type=int, default=2)
    ap.add_argument("--fakex", type=int, default=0)
    ap.add_argument("--oearly", type=int, default=1)
    ap.add_argument("--rsleep", type=int, default=2)
    ap.add_argument("--spin", type=int, default=17)
    ap.add_argument("--ts", type=int, default=0)
    o = ap.parse_args()
    a = Asm()
    a.raw(HDR.rstrip("\n"))
    a.raw(f"; @launch grid=(256,1,1) block=(512,1,1) lds={LDS_BYTES}")
    a.raw('.amdgcn_target "amdgcn-amd-amdhsa--gfx950"')
    a.raw(".text")
    gen(a, o)
    a.raw('.section .rodata,"a"'); a.raw(".p2align 6")
    a.raw(f".amdhsa_kernel {KN}")
    a.raw("  .amdhsa_next_free_vgpr 256"); a.raw("  .amdhsa_next_free_sgpr 102"); a.raw("  .amdhsa_accum_offset 256")
    a.raw("  .amdhsa_group_segment_fixed_size 0"); a.raw("  .amdhsa_kernarg_size 112"); a.raw("  .amdhsa_user_sgpr_count 2")
    a.raw("  .amdhsa_user_sgpr_kernarg_segment_ptr 1"); a.raw("  .amdhsa_system_sgpr_workgroup_id_x 1")
    a.raw("  .amdhsa_float_denorm_mode_32 3")
    a.raw(".end_amdhsa_kernel")
    open(o.o, "w").write(a.text())
main()
```

```python
import sys, argparse, struct
from asmlib import Asm
KN = "gated_mix__mha_block_cached__dense_activation_squared_relu__decode_kernel"
HDR = open("gated_mix__mha_block_cached__dense_activation_squared_relu__decode.s.ref").read().split("; Override launch")[0]
def f2u(f): return struct.unpack("<I", struct.pack("<f", f))[0]
QS = 0
MX = 512
CN = 576
PS = 1024
RP = 4096
OA = 4096
OP = 12288
LDS_BYTES = 20480
WS_EP = 0
WS_ML = 0x8000
WS_Q = 0x10000
WS_H = 0x50000
WS_O = 0x90000
WS_P = 0x110000
WS_END = 0x180000
WS_TS = 0x400000
C_SCALE = 0.0625 * 1.4426950408889634
OOB = "0x80000000"

DOC = """
One launch, 256 workgroups (one per CU) x 8 waves.  Workgroup = (batch b, head h, key split s of 512 keys).
 * K then V are streamed once (1 KiB wave loads, 4 in flight per wave, sequential window per CU).
 * q = x@wq and h = x@w1 are produced as partial sums (each workgroup reads a full-line tile of wq / w1 once)
   and handed over through d_ws; scores are rounded to bf16 like the reference, softmax uses the true max
   (per-wave max, rescaled with the global max / sum exchanged through d_ws).
 * o partials -> (per head) 14 workgroups multiply a [128 x 64] tile of wo and a [56 x 64] tile of w2 for both
   batches -> 112 waves add the 32 partials per output and apply bias / gate with the reference's roundings.
 * Every hand-off word pair is {value, tag}; tag = f(epoch word of d_ws), the epoch is advanced at the end of
   the launch, so data of earlier launches is never taken.  Hand-offs use device-scope (sc1) stores and loads;
   the o hand-off stays in the L2 only when the 16 workgroups of the head report the same XCC id.
 * All polling loops are bounded.
"""
def srd(a, d, p, nbytes):
    a.I(f"s_mov_b32 s{d}, s{p}"); a.I(f"s_mov_b32 s{d+1}, s{p+1}")
    a.I(f"s_mov_b32 s{d+2}, {nbytes}"); a.I(f"s_mov_b32 s{d+3}, 0x20000")
def dpp(op, d, s0, s1, ctrl, rm="0xf", bm="0xf"):
    return f"{op}_dpp v{d}, v{s0}, v{s1} {ctrl} row_mask:{rm} bank_mask:{bm}"
def wave_reduce63(a, op, vs):
    if isinstance(vs, int): vs = [vs]
    for c, rm in (("quad_perm:[1,0,3,2]", "0xf"), ("quad_perm:[2,3,0,1]", "0xf"), ("row_half_mirror", "0xf"), ("row_mirror", "0xf"),
                  ("row_bcast:15", "0xa"), ("row_bcast:31", "0xc")):
        for v in vs: a.I(dpp(op, v, v, v, c, rm=rm))
X8 = ("quad_perm:[1,0,3,2]", "quad_perm:[2,3,0,1]", "row_half_mirror")

def gen(a, o):
    D = o.depth
    SPIN = 1 << o.spin
    kvf, wf = o.kvflags, o.wflags
    nst = [0]
    VTS = 255
    def stamp(lvl=1):
        if o.ts != lvl and not (lvl == 3 and o.ts): return
        a.I("s_memrealtime s[98:99]")
        a.I("s_waitcnt lgkmcnt(0)"); a.smem = False; a.lg = []
        a.I(f"v_writelane_b32 v{VTS}, s98, {nst[0]}")
        nst[0] += 1
    (sH, sB, sS, sI, sROW, sT, sU, sSO, sSELL, sSELH, sXCC, sBH, sCGW, sPR, sTASK, sCNT, sCG, sRG, sW, sRED) = range(76, 96)
    sM3, sM4 = 100, 96
    sCG1, sRG1, sEP = sW, sXCC, sTASK
    a.raw(f".globl {KN}"); a.raw(".p2align 8"); a.raw(f".type {KN},@function"); a.raw(f"{KN}:")
    a.I("s_cmp_ge_u32 s2, 256")
    a.I("s_cbranch_scc1 L_end")
    if o.ts: a.I("s_memrealtime s[96:97]")
    a.I("s_load_dwordx8 s[4:11], s[0:1], 0")
    a.I("s_load_dwordx8 s[12:19], s[0:1], 32")
    a.I("s_load_dwordx8 s[20:27], s[0:1], 64")
    a.I("s_load_dwordx4 s[28:31], s[0:1], 96")
    a.I("v_lshrrev_b32 v6, 6, v0")
    a.I("v_and_b32 v1, 63, v0")
    a.I("v_readfirstlane_b32 s3, v6")
    a.I(f"s_and_b32 s{sRG1}, s2, 7")
    a.I(f"s_lshl_b32 s{sH}, s{sRG1}, 1")
    a.I(f"s_bfe_u32 s{sT}, s2, 0x10003")
    a.I(f"s_add_u32 s{sH}, s{sH}, s{sT}")
    a.I(f"s_bfe_u32 s{sB}, s2, 0x10004")
    a.I(f"s_lshr_b32 s{sS}, s2, 5")
    a.I(f"s_lshl_b32 s{sBH}, s{sB}, 4")
    a.I(f"s_add_u32 s{sBH}, s{sBH}, s{sH}")
    a.I(f"s_lshl_b32 s{sROW}, s{sBH}, 3")
    a.I(f"s_add_u32 s{sROW}, s{sROW}, s{sS}")
    a.I(f"s_lshl_b32 s{sT}, s{sROW}, 18")
    a.I(f"s_mul_i32 s{sU}, s3, {o.gran}")
    a.I(f"s_add_u32 s{sT}, s{sT}, s{sU}")
    a.I("v_lshlrev_b32 v7, 4, v1")
    a.I(f"v_add_u32 v2, s{sT}, v7")
    a.I("s_mov_b32 s34, 0x4000000"); a.I("s_mov_b32 s35, 0x20000")
    def proj_addr():
        a.I(f"s_lshl_b32 s{sI}, s{sB}, 3")
        a.I(f"s_add_u32 s{sI}, s{sI}, s{sS}")
        a.I(f"s_and_b32 s{sCG}, s{sI}, 3")
        a.I(f"s_lshr_b32 s{sRG}, s{sI}, 2")
        a.I(f"s_lshr_b32 s{sCG1}, s2, 3")
        a.I("v_lshrrev_b32 v23, 3, v1")
        a.I("v_and_b32 v25, 7, v1")
        a.I("v_lshlrev_b32 v24, 4, v25")
        a.I(f"s_mul_i32 s{sT}, s{sRG}, 112")
        a.I(f"s_lshl_b32 s{sU}, s3, 4")
        a.I(f"s_add_u32 s{sT}, s{sT}, s{sU}")
        a.I(f"v_lshl_add_u32 v21, v23, 1, s{sT}")
        a.I(f"s_lshl_b32 s{sT}, s{sH}, 9")
        a.I(f"s_lshl_b32 s{sU}, s{sCG}, 7")
        a.I(f"s_add_u32 s{sT}, s{sT}, s{sU}")
        a.I(f"s_lshl_b32 s{sU}, s{sCG1}, 7")
        a.I("s_cmp_ge_u32 s2, 224")
        a.I(f"s_cselect_b32 s{sU}, {OOB}, s{sU}")
        a.I("s_cmp_eq_u32 s3, 7")
        a.I(f"s_cselect_b32 s{sT}, {OOB}, s{sT}")
        a.I(f"s_cselect_b32 s{sU}, {OOB}, s{sU}")
        a.I("v_lshl_add_u32 v3, v21, 13, v24")
        a.I(f"v_add_u32 v3, s{sT}, v3")
        a.I(f"s_mul_i32 s{sT}, s{sRG1}, 56")
        a.I(f"s_lshl_b32 s{sCNT}, s3, 3")
        a.I(f"s_add_u32 s{sT}, s{sT}, s{sCNT}")
        a.I(f"v_add_u32 v22, s{sT}, v23")
        a.I("v_mul_u32_u24 v20, 0xe00, v22")
        a.I(f"v_add3_u32 v20, v20, v24, s{sU}")
        a.I("v_and_b32 v22, -2, v22")
        a.I(f"s_mov_b32 s{sM3}, 0xcccccccc"); a.I(f"s_mov_b32 s{sM3+1}, 0xcccccccc")
        a.I(f"v_cndmask_b32 v21, v21, v22, s[{sM3}:{sM3+1}]")
        a.I("v_and_b32 v22, 1, v1")
        a.I("v_mul_u32_u24 v22, 0x380, v22")
        a.I("v_lshl_add_u32 v21, v21, 1, v22")
        for d, n in ((42, 448 * 8192), (50, 448 * 3584), (62, 1792)):
            a.I(f"s_mov_b32 s{d}, {n}"); a.I(f"s_mov_b32 s{d+1}, 0x20000")
    if o.pre: proj_addr()
    a.I("s_waitcnt lgkmcnt(0)"); a.smem = False
    if o.ts: a.I(f"v_writelane_b32 v{VTS}, s96, 14")
    stamp(3)
    a.I("s_mov_b32 s32, s6"); a.I("s_mov_b32 s33, s7")
    NB0 = 64
    ACC = 236
    pool = list(range(NB0, ACC, 4))
    buf = {}
    hiwater = [0]
    def alloc(tag):
        r = pool.pop(0); buf[tag] = r; hiwater[0] = max(hiwater[0], len(buf)); return r
    def free(tag): pool.append(buf.pop(tag))
    last_so = [None]
    def set_so(v):
        if v == 0: return "0"
        if last_so[0] != v:
            a.I(f"s_mov_b32 s{sSO}, {v}"); last_so[0] = v
        return f"s{sSO}"
    def issue(tag):
        kind, i = tag
        r = alloc(tag)
        if kind in ("K", "V"):
            lpc = o.gran // 1024
            off = (i // lpc) * 8 * o.gran + (i % lpc) * 1024
            so = set_so(off & ~4095)
            sr = "s[32:35]" if kind == "K" else "s[36:39]"
            a.I(f"buffer_load_dwordx4 v[{r}:{r+3}], v2, {sr}, {so} offen offset:{off & 4095} {kvf if kind == 'K' or o.vflags is None else o.vflags}", tag)
        elif kind == "WQ":
            so = set_so(i * 8192)
            a.I(f"buffer_load_dwordx4 v[{r}:{r+3}], v3, s[40:43], {so} offen {o.pflags}", tag)
        elif kind == "W1":
            a.I(f"buffer_load_dwordx4 v[{r}:{r+3}], v20, s[48:51], 0 offen {o.pflags}", tag)
        elif kind == "WO":
            a.I(f"buffer_load_dwordx4 v[{r}:{r+3}], v4, s[44:47], 0 offen offset:{i*896} {wf}", tag)
        elif kind == "W2":
            a.I(f"buffer_load_dwordx4 v[{r}:{r+3}], v5, s[52:55], 0 offen {wf}", tag)
    stream = [("K", i) for i in range(32)] + [("V", i) for i in range(32)]
    tailw = [("W2", 0), ("WO", 0), ("WO", 1)]
    issued = set()
    nxt = [0]
    def flush_tailw():
        while tailw:
            t = tailw.pop(0); issue(t); issued.add(t)
    def slot(nowait=False):
        n = nxt[0]
        if n >= len(stream): return False
        if n >= D and not nowait: a.wait_vm(stream[n - D])
        issue(stream[n]); issued.add(stream[n]); nxt[0] += 1
        if o.wo_early >= 0 and n == len(stream) - 1 - o.wo_early: flush_tailw()
        return True
    def landed(tag): return tag not in a.vm and tag in issued
    for _ in range(o.init): slot(True)
    stamp(2)
    if not o.pre: proj_addr()
    a.I("s_mov_b32 s40, s10"); a.I("s_mov_b32 s41, s11")
    issue(("WQ", 0)); issue(("WQ", 1))
    a.I("s_mov_b32 s48, s16"); a.I("s_mov_b32 s49, s17")
    issue(("W1", 0))
    a.I("s_mov_b32 s60, s4"); a.I("s_mov_b32 s61, s5")
    a.I("buffer_load_dword v36, v21, s[60:63], 0 offen", "X")
    a.I(f"s_load_dword s{sEP}, s[30:31], {WS_EP}")
    for _ in range(o.init2): slot(True)
    stamp(2)
    a.I("v_lshrrev_b32 v6, 5, v1")
    a.I(f"s_mov_b32 s{sSELL}, 0x05040100")
    a.I(f"s_mov_b32 s{sSELH}, 0x07060302")
    a.I("v_lshrrev_b32 v12, 4, v1")
    a.I("v_bfe_u32 v13, v1, 3, 1")
    a.I("v_lshl_add_u32 v12, v13, 2, v12")
    a.I("v_lshl_add_u32 v11, v25, 3, v12")
    a.I(f"s_lshl_b32 s{sT}, s3, 8")
    a.I(f"v_lshl_add_u32 v34, v11, 2, s{sT}")
    a.I(f"s_lshl_b32 s{sT}, s3, 10")
    a.I(f"v_lshl_add_u32 v29, v11, 3, s{sT}")
    a.I("v_lshlrev_b32 v26, 4, v13")
    srd(a, 56, 30, WS_TS + 0x20000 if o.ts else WS_END)
    a.I(f"s_lshl_b32 s{sT}, s{sH}, 13")
    a.I(f"s_lshl_b32 s{sU}, s{sCG}, 9")
    a.I(f"s_add_u32 s{sT}, s{sT}, s{sU}")
    a.I(f"s_lshl_b32 s{sU}, s{sRG}, 11")
    a.I(f"s_add_u32 s{sT}, s{sT}, s{sU}")
    a.I(f"s_add_u32 s{sCG}, s{sT}, {WS_Q}")
    a.I(f"s_lshl_b32 s{sT}, s{sCG1}, 9")
    a.I(f"s_mul_i32 s{sU}, s{sRG1}, 14336")
    a.I(f"s_add_u32 s{sT}, s{sT}, s{sU}")
    a.I(f"s_add_u32 s{sT}, s{sT}, {WS_H}")
    a.I("s_cmp_ge_u32 s2, 224")
    a.I(f"s_cselect_b32 s{sT}, {OOB}, s{sT}")
    a.I("s_cmp_eq_u32 s3, 0")
    a.I(f"s_cselect_b32 s{sCG}, s{sCG}, s{sT}")
    a.I(f"s_mov_b32 s{sT}, 114688")
    a.I(f"s_cselect_b32 s{sT}, 0x20000, s{sT}")
    a.I("v_and_b32 v30, 31, v1")
    a.I("v_lshlrev_b32 v27, 3, v30")
    a.I("v_lshlrev_b32 v30, 4, v30")
    a.I(f"v_mul_lo_u32 v11, v6, s{sT}")
    a.I(f"v_add3_u32 v30, v30, v11, s{sCG}")
    a.I("v_lshrrev_b32 v11, 5, v0")
    a.I("v_lshl_add_u32 v27, v11, 11, v27")
    a.I("v_mov_b32 v11, 0")
    a.I(f"ds_write_b32 v11, v11 offset:{CN}")
    stamp(2)
    while nxt[0] < o.s_proj: slot()
    stamp(2)
    def tred8x2(b0, d0, b1, d1):
        for b in (b0, b1):
            for e in range(4): a.I(f"v_permlane16_swap_b32 v{b+2*e}, v{b+1+2*e}")
        for b in (b0, b1):
            for e in range(4): a.I(f"v_add_f32 v{b+2*e}, v{b+2*e}, v{b+1+2*e}")
        for b in (b0, b1):
            a.I(f"v_permlane32_swap_b32 v{b}, v{b+2}"); a.I(f"v_permlane32_swap_b32 v{b+4}, v{b+6}")
        for b in (b0, b1):
            a.I(f"v_add_f32 v{b}, v{b}, v{b+2}"); a.I(f"v_add_f32 v{b+4}, v{b+4}, v{b+6}")
        for b, d in ((b0, d0), (b1, d1)): a.I(dpp("v_add_f32", d, b, b, "row_ror:8", bm="0x3"))
        for b, d in ((b0, d0), (b1, d1)): a.I(dpp("v_add_f32", d, b + 4, b + 4, "row_ror:8", bm="0xc"))
    def pair_rows(tA, tB, spare):
        A = [buf[tA] + e for e in range(4)]; B = [buf[tB] + e for e in range(4)]
        out = []; sp = [spare]
        for e in range(4):
            t = sp.pop(0)
            a.I(f"v_perm_b32 v{t}, v{B[e]}, v{A[e]}, s{sSELL}")
            a.I(f"v_perm_b32 v{B[e]}, v{B[e]}, v{A[e]}, s{sSELH}")
            sp.append(A[e]); out += [t, B[e]]
        return out
    a.wait_vm("X")
    stamp(2)
    for k in range(4): a.I(f"v_mov_b32_dpp v{37+k}, v36 quad_perm:[{k},{k},{k},{k}] row_mask:0xf bank_mask:0xf")
    wq = pair_rows(("WQ", 0), ("WQ", 1), 8)
    for b in range(2):
        for c in range(8): a.I(f"v_dot2_f32_bf16 v{ACC+8*b+c}, v{wq[c]}, v{37+b}, 0")
    slot()
    a.I("v_bfe_u32 v41, v39, v26, 16"); a.I("v_bfe_u32 v43, v40, v26, 16")
    tred8x2(ACC, 16, ACC + 8, 17)
    a.I("v_lshlrev_b32 v42, 16, v41"); a.I("v_lshlrev_b32 v44, 16, v43")
    a.I(f"ds_write_b32 v34, v16 offset:{RP}")
    a.I(f"ds_write_b32 v34, v17 offset:{RP+2048}")
    free(("WQ", 0)); free(("WQ", 1))
    slot()
    r = buf[("W1", 0)]
    for b in range(2):
        for e in range(4):
            a.I(f"v_dot2_f32_bf16 v{ACC+8*b+2*e}, v{r+e}, v{41+2*b}, 0")
            a.I(f"v_dot2_f32_bf16 v{ACC+8*b+2*e+1}, v{r+e}, v{42+2*b}, 0")
    tred8x2(ACC, 18, ACC + 8, 19)
    a.I(f"ds_write_b32 v34, v18 offset:{RP+4096}")
    a.I(f"ds_write_b32 v34, v19 offset:{RP+6144}")
    free(("W1", 0))
    if o.preb: slot()
    a.wait_lg()
    a.I(f"s_mul_i32 s{sT}, s{sEP}, 0x9E3779B1")
    a.I(f"s_add_u32 s{sT}, s{sT}, 0x7F4A7C15")
    a.I(f"v_mov_b32 v32, s{sT}")
    stamp(2)
    a.I("s_barrier")
    stamp(2)
    a.I("s_cmp_ge_u32 s3, 2")
    a.I("s_cbranch_scc1 L_pjdone")
    for w in range(8): a.I(f"ds_read_b64 v[{36+2*w}:{37+2*w}], v27 offset:{RP + w*256}", ("s8", w))
    for lv in (1, 2, 4):
        for w in range(0, 8, 2*lv):
            if lv == 1: a.wait_lg(("s8", w + 1))
            for k in range(2): a.I(f"v_add_f32 v{36+2*w+k}, v{36+2*w+k}, v{36+2*(w+lv)+k}")
    a.I("v_mov_b32 v38, v37"); a.I("v_mov_b32 v37, v32"); a.I("v_mov_b32 v39, v32")
    a.I("buffer_store_dwordx4 v[36:39], v30, s[56:59], 0 offen sc1"); a.vm.pop()
    a.label("L_pjdone")
    stamp(1)
    def su_srd():
        srd(a, 36, 8, 64 << 20)
        srd(a, 44, 12, 4096 * 896)
        srd(a, 52, 20, 1792 * 896)
        srd(a, 64, 24, 896)
        srd(a, 68, 22, 896)
        srd(a, 72, 26, 1792)
        srd(a, 12, 18, 3584)
        a.I(f"s_mov_b32 s{sM4}, 0xaaaaaaaa"); a.I(f"s_mov_b32 s{sM4+1}, 0xaaaaaaaa")
    def su_unit():
        a.I(f"s_cmp_ge_u32 s{sI}, 7")
        a.I(f"s_cselect_b32 s{sT}, 1, 0")
        a.I(f"s_lshl_b32 s{sPR}, s{sH}, 1")
        a.I(f"s_add_u32 s{sPR}, s{sPR}, s{sT}")
        a.I(f"s_mul_i32 s{sT}, s{sT}, 7")
        a.I(f"s_sub_u32 s{sCGW}, s{sI}, s{sT}")
        a.I(f"s_lshl_b32 s{sT}, s{sPR}, 3")
        a.I(f"s_add_u32 s{sT}, s{sT}, s3")
        a.I(f"s_mul_i32 s{sT}, s{sT}, {16*896}")
        a.I(f"s_lshl_b32 s{sU}, s{sCGW}, 7")
        a.I(f"s_add_u32 s{sT}, s{sT}, s{sU}")
        a.I(f"s_cmp_ge_u32 s{sI}, 14")
        a.I(f"s_cselect_b32 s{sT}, {OOB}, s{sT}")
        a.I(f"s_cselect_b32 s{sU}, {OOB}, s{sU}")
        a.I("v_mul_u32_u24 v4, 0x700, v23")
        a.I(f"v_add3_u32 v4, v4, v24, s{sT}")
        a.I(f"s_mul_i32 s{sT}, s{sPR}, 56")
        a.I(f"s_lshl_b32 s{sCNT}, s3, 3")
        a.I(f"s_add_u32 s{sT}, s{sT}, s{sCNT}")
        a.I(f"v_add_u32 v22, s{sT}, v23")
        a.I("s_cmp_eq_u32 s3, 7")
        a.I(f"s_cselect_b32 s{sU}, {OOB}, s{sU}")
        a.I("v_mul_u32_u24 v5, 0x380, v22")
        a.I(f"v_add3_u32 v5, v5, v24, s{sU}")
        a.I(f"v_add_u32 v22, s{sT}, v25")
        a.I("v_lshlrev_b32 v35, 1, v22")
        a.I(f"s_and_b32 s{sU}, s{sU}, {OOB}")
        a.I(f"s_add_u32 s{sU}, s{sU}, {WS_H}")
        a.I("v_lshrrev_b32 v26, 1, v22")
        a.I("v_mul_u32_u24 v63, 0x3800, v23")
        a.I("v_lshl_add_u32 v63, v26, 4, v63")
        a.I(f"v_add_u32 v63, s{sU}, v63")
        a.I(f"v_mov_b32 v31, s{sCNT}")
    def su_tail():
        a.I(f"s_lshl_b32 s{sT}, s{sBH}, 14")
        a.I(f"s_lshl_b32 s{sU}, s{sS}, 4")
        a.I(f"s_add_u32 s{sT}, s{sT}, s{sU}")
        a.I("v_and_b32 v20, 3, v0")
        a.I("v_cmp_eq_u32 vcc, 0, v20")
        a.I(f"v_lshl_add_u32 v60, v0, 5, s{sT}")
        a.I(f"v_mov_b32 v61, {OOB}")
        a.I("v_cndmask_b32 v60, v61, v60, vcc")
        a.I("v_lshrrev_b32 v59, 2, v0")
        a.I("v_lshrrev_b32 v58, 3, v59")
        a.I("v_lshlrev_b32 v58, 12, v58")
        a.I("v_and_b32 v62, 7, v59")
        a.I("v_lshl_add_u32 v58, v62, 4, v58")
        a.I(f"s_lshl_b32 s{sT}, s{sCGW}, 16")
        a.I(f"s_lshl_b32 s{sU}, s{sPR}, 7")
        a.I(f"s_add_u32 s{sT}, s{sT}, s{sU}")
        a.I(f"v_add_u32 v58, s{sT}, v58")
        a.I("v_cndmask_b32 v58, v61, v58, vcc")
        a.I("v_lshlrev_b32 v59, 3, v59")
        a.I("v_lshl_add_u32 v59, v20, 11, v59")
        a.I(f"s_lshl_b32 s{sT}, s{sPR}, 13")
        a.I(f"s_lshl_b32 s{sU}, s3, 10")
        a.I(f"s_add_u32 s{sT}, s{sT}, s{sU}")
        a.I(f"v_add_u32 v61, s{sT}, v7")
        a.I("v_and_b32 v27, 31, v1")
        a.I("v_lshlrev_b32 v27, 4, v27")
        a.I("v_lshlrev_b32 v28, 1, v27")
        a.I("v_lshl_add_u32 v28, v6, 4, v28")
        a.I(f"v_add_u32 v28, s{sU}, v28")
    def su_task():
        a.I(f"s_and_b32 s{sT}, s{sI}, 1")
        a.I(f"s_lshl_b32 s{sU}, s{sH}, 1")
        a.I(f"s_add_u32 s{sT}, s{sT}, s{sU}")
        a.I(f"s_lshl_b32 s{sT}, s{sT}, 2")
        a.I(f"s_and_b32 s{sU}, s3, 3")
        a.I(f"s_add_u32 s{sTASK}, s{sT}, s{sU}")
        a.I(f"s_cmp_ge_u32 s{sI}, 14")
        a.I(f"s_cselect_b32 s{sRED}, 56, 0")
        a.I("s_cmp_ge_u32 s3, 4")
        a.I(f"s_cselect_b32 s{sRED}, 0, s{sRED}")
        a.I(f"s_cmp_ge_u32 s{sTASK}, 112")
        a.I(f"s_cselect_b32 s{sRED}, 0, s{sRED}")
        a.I(f"s_lshl_b32 s{sT}, s{sTASK}, 12")
        a.I(f"v_add_u32 v62, s{sT}, v7")
        a.I(f"s_bfe_u32 s{sCG}, s{sTASK}, 0x10003")
        a.I(f"s_mul_i32 s{sCG}, s{sCG}, 896")
        a.I(f"s_lshr_b32 s{sU}, s{sTASK}, 4")
        a.I(f"s_lshl_b32 s{sU}, s{sU}, 7")
        a.I(f"s_and_b32 s{sCNT}, s{sTASK}, 7")
        a.I(f"s_lshl_b32 s{sCNT}, s{sCNT}, 4")
        a.I(f"s_add_u32 s{sRG}, s{sU}, s{sCNT}")
        a.I("v_lshlrev_b32 v33, 1, v25")
        a.I(f"s_add_u32 s{sT}, s{sCG}, s{sRG}")
        a.I("v_and_b32 v57, 0x39, v1")
        a.I("v_cmp_eq_u32 vcc, 0, v57")
        a.I(f"v_add_u32 v26, s{sT}, v33")
        a.I(f"v_mov_b32 v57, {OOB}")
        a.I("v_cndmask_b32 v57, v57, v26, vcc")
        a.I(f"v_cmp_gt_u32 vcc, s{sRED}, v1")
        a.I(f"v_mov_b32 v56, {OOB}")
        a.I("v_cndmask_b32 v56, v56, v7, vcc")
    def su_touch():
        a.I("s_cmp_lg_u32 s3, 6")
        a.I("s_cbranch_scc1 L_notouch")
        a.I("s_mov_b64 exec, 1")
        n0 = len(a.vm)
        a.I(f"buffer_load_dword v52, v2, s[36:39], 0 offen {kvf}")
        a.I(f"s_cmp_ge_u32 s{sI}, 14")
        a.I("s_cbranch_scc1 L_touch2")
        a.I(f"buffer_load_dword v53, v4, s[44:47], 0 offen {wf}")
        a.I(f"buffer_load_dword v54, v5, s[52:55], 0 offen {wf}")
        a.I("buffer_load_ushort v55, v35, s[12:15], 0 offen")
        a.I("s_branch L_touch3")
        a.label("L_touch2", nop=False)
        a.I("buffer_load_dword v53, v7, s[72:75], 0 offen")
        a.I("buffer_load_dword v54, v7, s[64:67], 0 offen")
        a.I("buffer_load_dword v55, v7, s[68:71], 0 offen")
        a.label("L_touch3", nop=False)
        a.vm = a.vm[:n0]
        a.I("s_mov_b64 exec, -1")
        a.label("L_notouch", nop=False)
    for f in (su_srd, su_unit, su_tail, su_task):
        slot(); f()
        if f is su_unit and o.touch == 1: su_touch()
    def poll_check(name, regs, mask, reissue, sleep=2):
        a.I(f"s_mov_b32 s{sCNT}, {SPIN}")
        a.label(f"L_{name}chk")
        a.I(f"v_cmp_ne_u32 vcc, v{regs[0]}, v32")
        for r in regs[1:]:
            a.I(f"v_cmp_ne_u32 s[98:99], v{r}, v32")
            a.I("s_or_b64 vcc, vcc, s[98:99]")
        a.I("s_cmp_lg_u32 vcc_lo, 0" if mask == "lo" else "s_cmp_lg_u64 vcc, 0")
        a.I(f"s_cbranch_scc0 L_{name}ok")
        a.I(f"s_sub_u32 s{sCNT}, s{sCNT}, 1")
        a.I(f"s_cbranch_scc1 L_{name}ok")
        if sleep: a.I(f"s_sleep {sleep}")
        n0 = len(a.vm)
        reissue()
        a.vm = a.vm[:n0]
        a.I("s_waitcnt vmcnt(0)")
        a.I(f"s_branch L_{name}chk")
        a.label(f"L_{name}ok")
        if o.ts:
            a.I(f"s_sub_u32 s98, {SPIN}, s{sCNT}")
            a.I(f"v_writelane_b32 v{VTS}, s98, {dict(q=10, h=11, ml=12)[name]}")
    def red45_pk(x, y, ror=False):
        a.I(f"v_permlane16_swap_b32 v{x}, v{y}")
        a.I(f"v_add_f32 v{x}, v{x}, v{y}")
        if ror: a.I(dpp("v_add_f32", x, x, x, "row_ror:8"))
        a.I(f"v_mov_b32 v{y}, v{x}")
        a.I(f"v_permlane32_swap_b32 v{x}, v{y}")
        a.I(f"v_add_f32 v{x}, v{x}, v{y}")
        a.I(f"v_mov_b32 v{y}, v{x}")
        a.I(f"v_permlane16_swap_b32 v{x}, v{y}")
        a.I(f"v_cvt_pk_bf16_f32 v{x}, v{x}, v{y}")
    a.I(f"s_lshl_b32 s{sW}, s{sBH}, 13")
    a.I(f"s_add_u32 s{sW}, s{sW}, {WS_Q}")
    a.I("v_lshrrev_b32 v22, 4, v1")
    a.I("v_lshlrev_b32 v22, 11, v22")
    a.I("v_and_b32 v21, 15, v1")
    a.I("v_lshlrev_b32 v21, 2, v21")
    a.I("v_lshl_add_u32 v21, v31, 3, v21")
    a.I("v_lshl_add_u32 v22, v21, 2, v22")
    while nxt[0] < o.s_poll: slot()
    qp = lambda tag=None: a.I(f"buffer_load_dwordx4 v[8:11], v22, s[56:59], s{sW} offen sc1", tag)
    qp("QP")
    for _ in range(D): slot()
    a.wait_vm("QP")
    poll_check("q", [9, 11], -1, qp)
    red45_pk(8, 10)
    a.I(f"ds_write_b32 v21, v8 offset:{QS}")
    slot()
    a.wait_lg()
    a.I("s_barrier")
    stamp(1)
    a.I(f"ds_read_b128 v[16:19], v27 offset:{QS}", "q")
    slot()
    if o.touch == 2: su_touch()
    a.wait_lg()
    lvl = {}
    tfree = [20, 21, 22, 23, 26, 27, 8, 9, 10, 11, 12, 13]
    def merge(level, A, B):
        if level == 0:
            a.I(f"v_permlane16_swap_b32 v{A}, v{B}")
            a.I(f"v_add_f32 v{A}, v{A}, v{B}")
            tfree.append(B); return A
        if level in (1, 2):
            R = tfree.pop(0)
            if level == 1:
                a.I(dpp("v_add_f32", R, A, A, "row_ror:8", bm="0x3"))
                a.I(dpp("v_add_f32", R, B, B, "row_ror:8", bm="0xc"))
            else:
                a.I(dpp("v_add_f32", R, A, A, "row_shl:4", bm="0x5"))
                a.I(dpp("v_add_f32", R, B, B, "row_shr:4", bm="0xa"))
            tfree.extend([A, B]); return R
        q = "quad_perm:[2,3,0,1]" if level == 3 else "quad_perm:[1,0,3,2]"
        m = f"s[{sM3}:{sM3+1}]" if level == 3 else f"s[{sM4}:{sM4+1}]"
        a.I(dpp("v_add_f32", A, A, A, q))
        a.I(dpp("v_add_f32", B, B, B, q))
        a.I(f"v_cndmask_b32 v{A}, v{A}, v{B}, {m}")
        tfree.append(B); return A
    def kcons(i):
        a.wait_vm(("K", i))
        r = buf[("K", i)]
        t = tfree.pop(0)
        a.I(f"v_dot2_f32_bf16 v{t}, v{r}, v16, 0")
        for e in range(1, 4): a.I(f"v_dot2_f32_bf16 v{t}, v{r+e}, v{16+e}, v{t}")
        free(("K", i))
        L = 0
        while L in lvl:
            t = merge(L, lvl.pop(L), t); L += 1
        lvl[L] = t
    kd = 0
    while kd < 32:
        c = 0
        while kd < 32 and c < o.kps and landed(("K", kd)):
            kcons(kd); kd += 1; c += 1
        if kd < 32: slot()
    vS = lvl[5]
    a.I(f"v_cvt_pk_bf16_f32 v{vS}, v{vS}, v{vS}")
    a.I(f"v_and_b32 v30, 0xffff0000, v{vS}")
    a.I("v_mov_b32 v20, v30")
    wave_reduce63(a, "v_max_f32", 20)
    a.I(f"v_readlane_b32 s{sT}, v20, 63")
    a.I("v_bfrev_b32 v22, v1")
    a.I("v_bfe_u32 v22, v22, 27, 5")
    a.I(f"v_mov_b32 v34, s{sT}")
    a.I("v_lshlrev_b32 v22, 2, v22")
    a.I(f"s_lshl_b32 s{sT}, s3, 8")
    a.I(f"v_lshl_add_u32 v23, v6, 7, s{sT}")
    a.I("v_add_u32 v22, v22, v23")
    a.I("v_sub_f32 v20, v30, v34")
    a.I(f"v_mul_f32 v20, {hex(f2u(C_SCALE))}, v20")
    a.I("v_exp_f32 v20, v20")
    a.I(f"ds_write_b32 v22, v20 offset:{PS}")
    a.I("v_mov_b32 v21, v20")
    PB = [16, 24]
    a.I(f"ds_read_b128 v[16:19], v23 offset:{PS}", ("p", 0))
    slot()
    stamp(1)
    wave_reduce63(a, "v_add_f32", 21)
    a.I(f"v_readlane_b32 s{sT}, v21, 63")
    a.I("v_mov_b32 v40, v34")
    a.I("v_mov_b32 v21, 0")
    a.I(f"v_mov_b32 v41, s{sT}")
    a.I("v_mov_b32 v20, 1")
    a.I(f"s_getreg_b32 s{sXCC}, hwreg(HW_REG_XCC_ID)")
    a.I(f"s_and_b32 s{sXCC}, s{sXCC}, 15")
    if o.fakex: a.I(f"s_lshr_b32 s{sXCC}, s2, 5")
    a.I("s_mov_b64 exec, 1")
    a.I(f"ds_write_b64 v31, v[40:41] offset:{MX}")
    a.I(f"ds_add_rtn_u32 v20, v21, v20 offset:{CN}")
    a.I("s_mov_b64 exec, -1")
    slot()
    a.wait_lg()
    a.I(f"v_readfirstlane_b32 s{sT}, v20")
    a.I(f"s_cmp_lg_u32 s{sT}, 7")
    a.I("s_cbranch_scc1 L_noml")
    a.I("v_and_b32 v22, 7, v1")
    a.I("v_lshlrev_b32 v22, 3, v22")
    a.I(f"ds_read_b64 v[40:41], v22 offset:{MX}")
    a.I("v_cmp_gt_u32 vcc, 2, v1")
    a.I(f"v_mov_b32 v22, {OOB}")
    a.I("v_cndmask_b32 v22, v22, v7, vcc")
    a.I(f"v_mov_b32 v20, s{sXCC}")
    a.I(f"s_lshl_b32 s{sT}, s{sROW}, 7")
    a.I(f"s_add_u32 s{sT}, s{sT}, {WS_ML}")
    a.wait_lg()
    a.I("v_mov_b32 v43, v40")
    for c in X8: a.I(dpp("v_max_f32", 43, 43, 43, c))
    a.I("v_sub_f32 v40, v40, v43")
    a.I(f"v_mul_f32 v40, {hex(f2u(C_SCALE))}, v40")
    a.I("v_exp_f32 v40, v40")
    a.I("v_mul_f32 v42, v41, v40")
    for c in X8: a.I(dpp("v_add_f32", 42, 42, 42, c))
    a.I(f"v_cndmask_b32 v40, v43, v20, s[{sM4}:{sM4+1}]"); a.I("v_mov_b32 v41, v32"); a.I("v_mov_b32 v43, v32")
    a.I(f"buffer_store_dwordx4 v[40:43], v22, s[56:59], s{sT} offen sc1"); a.vm.pop()
    a.label("L_noml")
    def vcons(i):
        if i % 4 == 0:
            c = i // 4
            if c + 1 < 8:
                nb = PB[(c + 1) & 1]
                a.I(f"ds_read_b128 v[{nb}:{nb+3}], v23 offset:{PS + (c+1)*16}", ("p", c + 1))
            a.wait_lg(("p", c))
        a.wait_vm(("V", i))
        r = buf[("V", i)]
        p = PB[(i // 4) & 1] + (i % 4)
        for e in range(4):
            a.I(f"v_lshlrev_b32 v20, 16, v{r+e}")
            a.I(f"v_and_b32 v21, 0xffff0000, v{r+e}")
            op = "v_mul_f32" if i == 0 else "v_fmac_f32"
            a.I(f"{op} v{8+2*e}, v20, v{p}")
            a.I(f"{op} v{9+2*e}, v21, v{p}")
        free(("V", i))
    vd = 0
    state = [0]
    def ml_issue(tag=None):
        a.I(f"buffer_load_dwordx4 v[36:39], v22, s[56:59], s{sW} offen sc1", tag)
    def hp(tag=None):
        a.I("buffer_load_dwordx4 v[44:47], v63, s[56:59], 0 offen sc1")
        a.I(f"buffer_load_dwordx4 v[48:51], v63, s[56:59], s{sW} offen sc1", tag)
    G = {}
    def side():
        st = state[0]
        if st == 0 and nxt[0] >= o.s_h:
            a.I(f"s_mov_b32 s{sW}, 114688")
            a.I("buffer_load_ushort v35, v35, s[12:15], 0 offen")
            hp("HP"); state[0] = 1
        elif st == 1 and "HP" not in a.vm:
            a.I(f"s_cmp_ge_u32 s{sI}, 14")
            a.I("s_cbranch_scc1 L_hok")
            a.I("s_cmp_eq_u32 s3, 7")
            a.I("s_cbranch_scc1 L_hok")
            poll_check("h", [45, 47, 49, 51], -1, hp)
            a.I("v_lshlrev_b32 v35, 16, v35")
            a.I(f"v_cndmask_b32 v20, v44, v46, s[{sM4}:{sM4+1}]")
            a.I(f"v_cndmask_b32 v48, v48, v50, s[{sM4}:{sM4+1}]")
            red45_pk(20, 48, ror=True)
            a.I("v_lshlrev_b32 v21, 16, v20"); a.I("v_and_b32 v22, 0xffff0000, v20")
            a.I("v_add_f32 v21, v35, v21"); a.I("v_add_f32 v22, v35, v22")
            a.I("v_cvt_pk_bf16_f32 v20, v21, v22")
            a.I("v_lshlrev_b32 v21, 16, v20"); a.I("v_and_b32 v22, 0xffff0000, v20")
            a.I("v_max_f32 v21, 0, v21"); a.I("v_max_f32 v22, 0, v22")
            a.I("v_mul_f32 v21, v21, v21"); a.I("v_mul_f32 v22, v22, v22")
            a.I("v_cvt_pk_bf16_f32 v44, v21, v22")
            a.I("v_lshrrev_b32 v45, 3, v1")
            a.I("v_lshlrev_b32 v45, 2, v45")
            a.I("ds_bpermute_b32 v35, v45, v44", "hb")
            G["x"], G["g"] = alloc("GX"), alloc("GG")
            a.I(f"s_cmp_eq_u32 s{sRED}, 0")
            a.I("s_cbranch_scc1 L_nog")
            n0 = len(a.vm)
            a.I(f"buffer_load_dwordx4 v[{G['x']}:{G['x']+3}], v56, s[60:63], s{sCG} offen")
            a.I(f"buffer_load_dwordx4 v[{G['g']}:{G['g']+3}], v56, s[64:67], 0 offen")
            a.I(f"buffer_load_ushort v33, v33, s[68:71], s{sRG} offen")
            a.vm = a.vm[:n0]
            a.label("L_nog", nop=False)
            state[0] = 2
        elif st == 2 and nxt[0] >= o.s_ml:
            a.I("v_lshrrev_b32 v30, 4, v1")
            a.I(f"v_xor_b32 v30, s{sB}, v30")
            a.I("v_lshlrev_b32 v30, 14, v30")
            a.I("v_bfe_u32 v22, v1, 1, 3")
            a.I("v_lshl_add_u32 v30, v22, 7, v30")
            a.I("v_and_b32 v22, 1, v1")
            a.I("v_lshl_add_u32 v30, v22, 4, v30")
            a.I("v_cmp_gt_u32 vcc, 32, v1")
            a.I(f"v_mov_b32 v22, {OOB}")
            a.I("v_cndmask_b32 v22, v22, v30, vcc")
            a.I(f"s_lshl_b32 s{sW}, s{sH}, 10")
            a.I(f"s_add_u32 s{sW}, s{sW}, {WS_ML}")
            ml_issue("MLP")
            state[0] = 3
        elif st == 3 and "MLP" not in a.vm:
            poll_check("ml", [37, 39], "lo", ml_issue)
            a.I(f"v_cmp_ne_u32 vcc, s{sXCC}, v36")
            a.I("v_mov_b32 v37, v36")
            a.I(f"s_and_b32 s{sXCC}, vcc_lo, 0xaaaaaaaa")
            for cc in ("quad_perm:[2,3,0,1]", "row_ror:4", "row_ror:8"):
                a.I(dpp("v_max_f32", 37, 37, 37, cc))
            a.I("v_sub_f32 v36, v36, v37")
            a.I("v_sub_f32 v39, v34, v37")
            a.I(f"v_mul_f32 v36, {hex(f2u(C_SCALE))}, v36")
            a.I(f"v_mul_f32 v39, {hex(f2u(C_SCALE))}, v39")
            a.I("v_exp_f32 v36, v36")
            a.I("v_exp_f32 v39, v39")
            a.I("v_mul_f32 v38, v38, v36")
            for cc in ("quad_perm:[2,3,0,1]", "row_ror:4", "row_ror:8"):
                a.I(dpp("v_add_f32", 38, 38, 38, cc))
            a.I("v_rcp_f32 v38, v38")
            a.I("v_mul_f32 v38, v38, v39")
            a.I(f"v_readfirstlane_b32 s{sW}, v38")
            a.wait_lg("hb")
            a.I("v_and_b32 v44, 0xffff, v35"); a.I("v_lshlrev_b32 v45, 16, v35")
            a.I("v_lshrrev_b32 v46, 16, v35"); a.I("v_and_b32 v47, 0xffff0000, v35")
            state[0] = 4
    while vd < 32:
        c = 0
        while vd < 32 and c < o.vps and (landed(("V", vd)) or nxt[0] >= len(stream)):
            vcons(vd); vd += 1; c += 1
            if o.wo_early < 0 and vd == 28 - o.wo_early: flush_tailw()
        side()
        slot()
    assert state[0] == 4
    stamp(1)
    for k in range(4): a.I(f"v_permlane32_swap_b32 v{8+k}, v{12+k}")
    for k in range(4): a.I(f"v_add_f32 v{8+k}, v{8+k}, v{12+k}")
    for k in range(4): a.I(f"v_mul_f32 v{8+k}, s{sW}, v{8+k}")
    a.I(f"ds_write_b128 v28, v[8:11] offset:{OA}")
    a.I(f"s_mov_b32 s{sT}, {WS_O}")
    a.I(f"s_mov_b32 s{sU}, {WS_O + 0x40000}")
    a.I(f"s_cmp_lg_u32 s{sXCC}, 0")
    a.wait_lg()
    a.I("s_barrier")
    def reduce8(base):
        a.I(f"ds_read_b64 v[36:37], v59 offset:{base}")
        a.I(f"ds_read_b64 v[40:41], v59 offset:{base+1024}")
        a.I("v_mov_b32 v39, v32")
        a.wait_lg()
        a.I("v_add_f32 v36, v36, v40"); a.I("v_add_f32 v38, v37, v41")
        a.I("v_mov_b32 v37, v32")
        for c in ("quad_perm:[1,0,3,2]", "quad_perm:[2,3,0,1]"):
            a.I(dpp("v_add_f32", 36, 36, 36, c)); a.I(dpp("v_add_f32", 38, 38, 38, c))
    reduce8(OA)
    a.I("s_cbranch_scc1 L_oslow")
    a.I(f"buffer_store_dwordx4 v[36:39], v60, s[56:59], s{sT} offen"); a.vm.pop()
    a.I("s_branch L_ost")
    a.label("L_oslow", nop=False)
    a.I(f"buffer_store_dwordx4 v[36:39], v60, s[56:59], s{sT} offen sc1"); a.vm.pop()
    a.label("L_ost", nop=False)
    stamp(1)
    a.I(f"s_cmp_ge_u32 s{sI}, 14")
    a.I("s_cbranch_scc1 L_red")
    def opoll():
        a.I(f"buffer_load_dwordx4 v[16:19], v61, s[56:59], s{sT} offen sc1")
        a.I(f"buffer_load_dwordx4 v[20:23], v61, s[56:59], s{sU} offen sc1")
    if o.oearly == 2:
        opoll(); a.I("s_waitcnt vmcnt(2)")
    else:
        a.I("s_waitcnt vmcnt(0)")
        if o.oearly: opoll()
    a.vm = []
    r = buf[("W2", 0)]
    for b in range(2):
        for e in range(4):
            a.I(f"v_dot2_f32_bf16 v{ACC+8*b+2*e}, v{r+e}, v{44+2*b}, 0")
            a.I(f"v_dot2_f32_bf16 v{ACC+8*b+2*e+1}, v{r+e}, v{45+2*b}, 0")
    wp = pair_rows(("WO", 0), ("WO", 1), 30)
    tred8x2(ACC, 49, ACC + 8, 51)
    a.I(f"s_mov_b32 s{sCNT}, {SPIN}")
    if o.oearly: a.I("s_branch L_ochk")
    a.label("L_opoll", nop=False)
    opoll()
    a.I(f"s_sub_u32 s{sCNT}, s{sCNT}, 1")
    a.I("s_cbranch_scc1 L_ook")
    a.label("L_ochk", nop=False)
    a.I("s_waitcnt vmcnt(0)")
    a.I("v_cmp_ne_u32 vcc, v17, v32")
    a.I("v_cmp_ne_u32 s[98:99], v19, v32")
    a.I("v_cmp_ne_u32 s[4:5], v21, v32")
    a.I("v_cmp_ne_u32 s[6:7], v23, v32")
    a.I("s_or_b64 vcc, vcc, s[98:99]")
    a.I("s_or_b64 s[4:5], s[4:5], s[6:7]")
    a.I("s_or_b64 vcc, vcc, s[4:5]")
    a.I("s_cbranch_scc1 L_opoll")
    a.label("L_ook", nop=False)
    a.vm = []
    stamp(1)
    for c in X8:
        for r in (16, 18, 20, 22): a.I(dpp("v_add_f32", r, r, r, c))
    a.I("v_cvt_pk_bf16_f32 v16, v16, v18")
    a.I("v_cvt_pk_bf16_f32 v20, v20, v22")
    for c in range(8): a.I(f"v_dot2_f32_bf16 v{ACC+c}, v{wp[c]}, v16, 0")
    for c in range(8): a.I(f"v_dot2_f32_bf16 v{ACC+8+c}, v{wp[c]}, v20, 0")
    tred8x2(ACC, 48, ACC + 8, 50)
    a.I(f"ds_write_b64 v29, v[48:49] offset:{OP}")
    a.I(f"ds_write_b64 v29, v[50:51] offset:{OP+512}")
    a.I(f"s_mov_b32 s{sT}, {WS_P}")
    a.wait_lg()
    a.I("s_barrier")
    reduce8(OP)
    a.I(f"buffer_store_dwordx4 v[36:39], v58, s[56:59], s{sT} offen sc1")
    stamp(1)
    a.I("s_branch L_fin")
    a.label("L_red", nop=False)
    if o.ts == 1:
        nst[0] -= 2; stamp(1); stamp(1)
    a.I(f"s_cmp_eq_u32 s{sRED}, 0")
    a.I("s_cbranch_scc1 L_fin")
    gx, gg = G["x"], G["g"]
    for e in range(4):
        a.I(f"v_lshlrev_b32 v20, 16, v{gx+e}"); a.I(f"v_and_b32 v21, 0xffff0000, v{gx+e}")
        a.I(f"v_lshlrev_b32 v22, 16, v{gg+e}"); a.I(f"v_and_b32 v26, 0xffff0000, v{gg+e}")
        a.I("v_mul_f32 v20, v20, v22"); a.I("v_mul_f32 v21, v21, v26")
        a.I(f"v_cvt_pk_bf16_f32 v{8+e}, v20, v21")
    for e in range(4):
        a.I(f"v_lshlrev_b32 v20, 16, v{8+e}"); a.I(f"v_and_b32 v21, 0xffff0000, v{8+e}")
        a.I(f"v_add_f32 v{8+e}, v20, v21")
    a.I("v_add_f32 v8, v8, v9"); a.I("v_add_f32 v10, v10, v11"); a.I("v_add_f32 v8, v8, v10")
    wave_reduce63(a, "v_add_f32", 8)
    a.I("v_cvt_pk_bf16_f32 v8, v8, v8")
    a.I("v_and_b32 v8, 0xffff0000, v8")
    a.I(f"v_mul_f32 v8, {hex(f2u(-1.4426950408889634))}, v8")
    a.I("v_exp_f32 v8, v8")
    a.I("v_add_f32 v8, 1.0, v8")
    a.I("v_rcp_f32 v8, v8")
    a.I("v_cvt_pk_bf16_f32 v8, v8, v8")
    a.I("v_and_b32 v8, 0xffff0000, v8")
    a.I("v_sub_f32 v9, 1.0, v8")
    a.I("v_cvt_pk_bf16_f32 v9, v9, v9")
    a.I("v_and_b32 v9, 0xffff0000, v9")
    a.I(f"v_readlane_b32 s{sT}, v8, 63")
    a.I(f"v_readlane_b32 s{sU}, v9, 63")
    a.I("v_and_b32 v10, 16, v1")
    a.I("v_cmp_ne_u32 vcc, 0, v10")
    a.I("v_lshlrev_b32 v33, 16, v33")
    a.I(f"v_mov_b32 v56, s{sT}")
    a.I(f"v_mov_b32 v8, s{sU}")
    a.I("v_cndmask_b32 v33, 0, v33, vcc")
    a.I("v_cndmask_b32 v56, v56, v8, vcc")
    a.I(f"s_mov_b32 s{sT}, {WS_P}")
    a.I(f"s_mov_b32 s{sCNT}, {SPIN}")
    for j in range(4): a.I(f"s_mov_b64 s[{4+2*j}:{5+2*j}], -1")
    a.label("L_rpoll", nop=False)
    for j in range(4):
        a.I(f"s_mov_b64 exec, s[{4+2*j}:{5+2*j}]")
        a.I(f"s_cbranch_execz L_rp{j}")
        a.I(f"buffer_load_dwordx4 v[{8+4*j}:{11+4*j}], v62, s[56:59], s{sT} offen offset:{1024*j} sc1")
        a.label(f"L_rp{j}", nop=False)
    a.I("s_mov_b64 exec, -1")
    a.I("s_waitcnt vmcnt(0)"); a.vm = []
    for j in range(4):
        a.I(f"v_cmp_ne_u32 s[{4+2*j}:{5+2*j}], v{9+4*j}, v32")
        a.I(f"v_cmp_ne_u32 s[{16+2*j}:{17+2*j}], v{11+4*j}, v32")
    for j in range(4): a.I(f"s_or_b64 s[{4+2*j}:{5+2*j}], s[{4+2*j}:{5+2*j}], s[{16+2*j}:{17+2*j}]")
    a.I("s_or_b64 vcc, s[4:5], s[6:7]")
    a.I("s_or_b64 s[98:99], s[8:9], s[10:11]")
    a.I("s_or_b64 vcc, vcc, s[98:99]")
    a.I("s_cbranch_scc0 L_rok")
    if o.rsleep: a.I(f"s_sleep {o.rsleep}")
    a.I(f"s_sub_u32 s{sCNT}, s{sCNT}, 1")
    a.I("s_cbranch_scc0 L_rpoll")
    a.label("L_rok", nop=False)
    a.I("v_add_f32 v8, v8, v12"); a.I("v_add_f32 v10, v10, v14"); a.I("v_add_f32 v16, v16, v20"); a.I("v_add_f32 v18, v18, v22")
    a.I("v_add_f32 v8, v8, v16"); a.I("v_add_f32 v10, v10, v18")
    a.I("v_permlane16_swap_b32 v8, v10")
    a.I("v_add_f32 v8, v8, v10")
    a.I(dpp("v_add_f32", 8, 8, 8, "row_ror:8"))
    a.I("v_mov_b32 v9, v8")
    a.I("v_permlane32_swap_b32 v8, v9")
    a.I("v_add_f32 v8, v8, v9")
    a.I("v_cvt_pk_bf16_f32 v8, v8, v8")
    a.I("v_and_b32 v8, 0xffff0000, v8")
    a.I("v_add_f32 v8, v8, v33")
    a.I("v_cvt_pk_bf16_f32 v8, v8, v8")
    a.I("v_and_b32 v8, 0xffff0000, v8")
    a.I("v_mul_f32 v8, v8, v56")
    a.I("v_cvt_pk_bf16_f32 v8, v8, v8")
    a.I("v_and_b32 v8, 0xffff0000, v8")
    a.I("v_mov_b32 v9, v8")
    a.I("v_permlane16_swap_b32 v8, v9")
    a.I("v_add_f32 v8, v8, v9")
    a.I("v_mov_b32_dpp v9, v8 quad_perm:[1,0,3,2] row_mask:0xf bank_mask:0xf")
    a.I("v_cvt_pk_bf16_f32 v8, v8, v9")
    a.I("buffer_store_dword v8, v57, s[72:75], 0 offen")
    a.I(f"s_cmp_lg_u32 s{sTASK}, 0")
    a.I("s_cbranch_scc1 L_fin")
    a.I("v_mov_b32 v9, 0")
    a.I("s_mov_b64 exec, 1")
    a.I(f"buffer_store_dword v32, v9, s[56:59], 0 offen offset:{WS_EP} sc1")
    a.I("s_mov_b64 exec, -1")
    a.label("L_fin", nop=bool(o.ts))
    if o.ts:
        stamp(3)
        a.I("v_cmp_gt_u32 vcc, 16, v1")
        a.I(f"v_mov_b32 v21, {OOB}")
        a.I("v_lshlrev_b32 v20, 2, v1")
        a.I("v_cndmask_b32 v20, v21, v20, vcc")
        a.I("s_lshl_b32 s98, s2, 3"); a.I("s_add_u32 s98, s98, s3"); a.I("s_lshl_b32 s98, s98, 6")
        a.I(f"s_add_u32 s98, s98, {WS_TS}")
        a.I(f"buffer_store_dword v{VTS}, v20, s[56:59], s98 offen")
    a.label("L_end", nop=False)
    a.I("s_endpgm")
    print("buffer high-water:", hiwater[0], file=sys.stderr)

def main():
    ap = argparse.ArgumentParser()
    ap.add_argument("-o", default="k.s")
    ap.add_argument("--kvflags", default="nt")
    ap.add_argument("--vflags", default=None)
    ap.add_argument("--wflags", default="nt")
    ap.add_argument("--pflags", default="nt")
    ap.add_argument("--depth", type=int, default=4)
    ap.add_argument("--gran", type=int, default=4096)
    ap.add_argument("--pre", type=int, default=1)
    ap.add_argument("--preb", type=int, default=1)
    ap.add_argument("--init", type=int, default=4)
    ap.add_argument("--init2", type=int, default=0)
    ap.add_argument("--s_proj", type=int, default=8)
    ap.add_argument("--s_poll", type=int, default=17)
    ap.add_argument("--s_h", type=int, default=42)
    ap.add_argument("--s_ml", type=int, default=52)
    ap.add_argument("--wo_early", type=int, default=-1)
    ap.add_argument("--kps", type=int, default=3)
    ap.add_argument("--touch", type=int, default=0)
    ap.add_argument("--vps", type=int, default=2)
    ap.add_argument("--fakex", type=int, default=0)
    ap.add_argument("--oearly", type=int, default=2)
    ap.add_argument("--rsleep", type=int, default=2)
    ap.add_argument("--spin", type=int, default=17)
    ap.add_argument("--ts", type=int, default=0)
    o = ap.parse_args()
    a = Asm()
    a.raw(HDR.rstrip("\n"))
    a.raw(f"; @launch grid=(256,1,1) block=(512,1,1) lds={LDS_BYTES}")
    a.raw('.amdgcn_target "amdgcn-amd-amdhsa--gfx950"')
    for line in DOC.strip("\n").split("\n"): a.raw("; " + line)
    a.raw(".text")
    gen(a, o)
    a.raw('.section .rodata,"a"'); a.raw(".p2align 6")
    a.raw(f".amdhsa_kernel {KN}")
    a.raw("  .amdhsa_next_free_vgpr 256"); a.raw("  .amdhsa_next_free_sgpr 102"); a.raw("  .amdhsa_accum_offset 256")
    a.raw("  .amdhsa_group_segment_fixed_size 0"); a.raw("  .amdhsa_kernarg_size 112"); a.raw("  .amdhsa_user_sgpr_count 2")
    a.raw("  .amdhsa_user_sgpr_kernarg_segment_ptr 1"); a.raw("  .amdhsa_system_sgpr_workgroup_id_x 1")
    a.raw("  .amdhsa_float_denorm_mode_32 3")
    a.raw(".end_amdhsa_kernel")
    open(o.o, "w").write(a.text())
main()
```
